```python
import torch

def _softmax(x, axis=-1):
    return torch.softmax(x, dim=axis)
def _gelu(x):
    return torch.nn.functional.gelu(x, approximate="tanh")
def _silu(x):
    return torch.nn.functional.silu(x)
def _sigmoid(x):
    return torch.sigmoid(x)
def _layernorm(x, axis=-1, eps=1e-5):
    m = x.mean(dim=axis, keepdim=True)
    v = x.var(dim=axis, keepdim=True, unbiased=False)
    return (x - m) / torch.sqrt(v + eps)
def _scatter_add(tgt, idx, src, axis=0):
    return tgt.clone().index_add_(axis, idx, src)
def _segment_sum(src, seg, n):
    out = torch.zeros((n,) + src.shape[1:], dtype=src.dtype)
    return out.index_add_(0, seg, src)
def _pad(x, pw):
    flat = tuple(v for pair in reversed(pw) for v in pair)
    return torch.nn.functional.pad(x, flat)

kernel_name = 'sequential_preLN__ssm_conv_s4__dense_activation_relu__prompt'

def setup_inputs():

    _w = (lambda a: (lambda t: t.to(torch.bfloat16) if t.is_floating_point() else t)(torch.as_tensor(a)))
    def _A_setup():
        B, L, D, N = 1, 2048, 448, 256
        A_re = -(lambda _x: torch.exp(torch.as_tensor(_x)))((lambda *s: torch.randn(*s, dtype=torch.bfloat16) * 3.2)(D, N))
        A_im = torch.pi * (lambda *s: torch.randn(*s, dtype=torch.bfloat16) * 0.05)(D, N)
        B_re = (lambda *s: torch.randn(*s, dtype=torch.bfloat16) * 0.05)(D, N)
        B_im = (lambda *s: torch.randn(*s, dtype=torch.bfloat16) * 0.05)(D, N)
        C_re = (lambda *s: torch.randn(*s, dtype=torch.bfloat16) * 0.05)(D, N)
        C_im = (lambda *s: torch.randn(*s, dtype=torch.bfloat16) * 0.05)(D, N)
        log_dt = (lambda *s: torch.randn(*s, dtype=torch.bfloat16) * 0.05)(D) * 0.5 - 4.0
        Dskip = (lambda *s: torch.randn(*s, dtype=torch.bfloat16) * 0.05)(D)
        return {
            "u": _w((lambda *s: torch.randn(*s, dtype=torch.bfloat16) * 0.05)(B, L, D)),
            "A_re": _w(A_re),
            "A_im": _w(A_im),
            "B_re": _w(B_re),
            "B_im": _w(B_im),
            "C_re": _w(C_re),
            "C_im": _w(C_im),
            "log_dt": _w(log_dt),
            "Dskip": _w(Dskip),
        }
    _A_in = _A_setup()

    def _B_setup():
        B, S, D, Dff = 1, 2048, 448, 1792
        return {
            "x": _w((lambda *s: torch.randn(*s, dtype=torch.bfloat16) * 0.05)(B, S, D)),
            "w1": _w((lambda *s: torch.randn(*s, dtype=torch.bfloat16) * 0.05)(D, Dff)),
            "w2": _w((lambda *s: torch.randn(*s, dtype=torch.bfloat16) * 0.05)(Dff, D)),
        }
    _B_in = _B_setup()

    return {
        "A_u": _A_in["u"],
        "A_A_re": _A_in["A_re"],
        "A_A_im": _A_in["A_im"],
        "A_B_re": _A_in["B_re"],
        "A_B_im": _A_in["B_im"],
        "A_C_re": _A_in["C_re"],
        "A_C_im": _A_in["C_im"],
        "A_log_dt": _A_in["log_dt"],
        "A_Dskip": _A_in["Dskip"],
        "B_x": _B_in["x"],
        "B_w1": _B_in["w1"],
        "B_w2": _B_in["w2"],
    }

def reference(A_u, A_A_re, A_A_im, A_B_re, A_B_im, A_C_re, A_C_im, A_log_dt, A_Dskip, B_x, B_w1, B_w2):
    def _A_ref(u, A_re, A_im, B_re, B_im, C_re, C_im, log_dt, Dskip):
        Bsz, L, D = u.shape
        dt = torch.exp(log_dt)[:, None]
        A = A_re + 1j * A_im
        Bc = B_re + 1j * B_im
        Cc = C_re + 1j * C_im
        logdA = dt * A
        dB = dt * Bc
        l = (lambda x, dt: x.to(dt))(torch.arange(L), A_re.dtype)
        P = torch.exp(logdA[:, :, None] * l[None, None, :])
        K = torch.einsum("dn,dnl,dn->dl", Cc, P, dB).real
        L2 = 2 * L
        Kp = _pad(K, ((0, 0), (0, L)))
        up = (lambda x, *d: x.permute(*d))(u, 0, 2, 1)
        up = _pad(up, ((0, 0), (0, 0), (0, L)))
        Kf = (lambda x, axes=(-2,-1): torch.fft.rfft2(x.float(), dim=axes))(Kp[:, None, :], axes=(-2, -1))
        Uf = (lambda x, axes=(-2,-1): torch.fft.rfft2(x.float(), dim=axes))(up[:, :, None, :], axes=(-2, -1))
        Yf = Uf * Kf[None, :, :, :]
        y = (lambda x, s, axes=(-2,-1): torch.fft.irfft2(x, s=s, dim=axes).to(torch.bfloat16))(Yf, (1, L2), axes=(-2, -1))[:, :, 0, :L]
        y = (lambda x, *d: x.permute(*d))(y, 0, 2, 1) + u * Dskip[None, None, :]
        return y

    def _B_ref(x, w1, w2):
        h = torch.einsum("bsd,df->bsf", x, w1)
        zero = torch.zeros_like(h)
        h = torch.maximum(h, zero)
        return torch.einsum("bsf,fd->bsd", h, w2)

    x = A_u
    h = x + _A_ref(_layernorm(x, axis=-1), A_A_re, A_A_im, A_B_re, A_B_im, A_C_re, A_C_im, A_log_dt, A_Dskip)
    h2 = h + _B_ref(_layernorm(h, axis=-1), B_w1, B_w2)
    return h2
```

```python
import re
TRANS = {"v_exp_f32","v_log_f32","v_rcp_f32","v_rsq_f32","v_sqrt_f32","v_sin_f32","v_cos_f32","v_rcp_iflag_f32"}

def split_ops(s):
    out=[];depth=0;cur=""
    for ch in s:
        if ch=="[":depth+=1
        if ch=="]":depth-=1
        if ch=="," and depth==0:
            out.append(cur.strip());cur=""
        else: cur+=ch
    if cur.strip(): out.append(cur.strip())
    return out

REG_RE=re.compile(r"^-?\|?(?:abs\()?([vas])(\d+)\)?\|?$")
RNG_RE=re.compile(r"^-?([vas])\[(\d+):(\d+)\]$")
def regs_of(tok):
    tok=tok.split()[0] if tok else tok
    m=REG_RE.match(tok)
    if m: return {(m.group(1),int(m.group(2)))}
    m=RNG_RE.match(tok)
    if m: return {(m.group(1),i) for i in range(int(m.group(2)),int(m.group(3))+1)}
    if tok=="vcc": return {("s",106),("s",107)}
    if tok=="vcc_lo": return {("s",106)}
    if tok=="vcc_hi": return {("s",107)}
    if tok=="exec": return {("x",0)}
    if tok=="m0": return {("m",0)}
    return set()

class Ins:
    def __init__(self,text):
        self.text=text
        t=text.split(";")[0].strip()
        parts=t.split(None,1)
        self.mn=parts[0]
        ops=split_ops(parts[1]) if len(parts)>1 else []
        self.ops=ops
        mn=self.mn
        self.mfma=mn.startswith("v_mfma")
        self.valu=mn.startswith("v_") and not self.mfma
        self.trans=mn.replace("_e32","").replace("_e64","") in TRANS
        self.salu=mn.startswith("s_")
        self.vmem=mn.startswith(("buffer_","global_","flat_"))
        self.ds=mn.startswith("ds_")
        self.ldsdma=self.vmem and (" lds" in t or "load_lds" in mn)
        self.dst=set();self.src=set();self.srcC=set();self.store_data=set()
        R=[regs_of(o) for o in ops]
        if self.mfma:
            self.dst=R[0]; self.src=R[1]|R[2]|R[3]; self.srcC=R[3]; self.srcAB=R[1]|R[2]
            self.passes= 8 if "32x32x16" in mn else 4
        elif self.valu:
            if "permlane" in mn and "swap" in mn:
                self.dst=R[0]|R[1]; self.src=R[0]|R[1]
            elif mn.startswith(("v_add_co","v_sub_co","v_addc_co","v_subb_co","v_subrev_co")):
                self.dst=R[0]|R[1]; self.src=set().union(*R[2:])
            else:
                self.dst=R[0]; self.src=set().union(*R[1:]) if len(R)>1 else set()
                if mn.startswith(("v_fmac","v_pk_fmac","v_dot2c","v_writelane")): self.src|=R[0]
                if mn.startswith("v_cndmask") and len(ops)==3: self.src|={("s",106),("s",107)}
        elif self.vmem:
            if "store" in mn or "atomic" in mn or self.ldsdma:
                self.src=set().union(*R) if R else set()
                if "store" in mn and ("x3" in mn or "x4" in mn):
                    self.store_data = R[0] if mn.startswith("buffer_") else R[1]
            else:
                self.dst=R[0]; self.src=set().union(*R[1:])
        elif self.ds:
            if mn.startswith(("ds_read","ds_bpermute","ds_permute","ds_swizzle")):
                self.dst=R[0]; self.src=set().union(*R[1:])
            else:
                self.src=set().union(*R)
        elif self.salu:
            if mn.startswith(("s_cmp","s_waitcnt","s_branch","s_cbranch","s_barrier","s_nop","s_endpgm","s_setprio","s_sleep")):
                self.src=set().union(*R) if R else set()
            else:
                self.dst=R[0] if R else set(); self.src=set().union(*R[1:]) if len(R)>1 else set()
                if "saveexec" in mn: self.dst|={("x",0)}
        self.states = int(ops[0],0)+1 if mn=="s_nop" else 1

def need(p,c):
    n=0
    isv=lambda S:{r for r in S if r[0] in "va"}
    iss=lambda S:{r for r in S if r[0]=="s"}
    if p.valu:
        pv=isv(p.dst); ps=iss(p.dst)
        if c.mfma and pv&c.src: n=max(n,2)
        if p.trans and c.valu and not c.trans and pv&c.src: n=max(n,1)
        if ps:
            if c.valu and ps&c.src: n=max(n,4 if c.mn.startswith(("v_readlane","v_writelane")) else 2)
            if c.vmem and ps&c.src: n=max(n,5)
        if c.mn.startswith(("v_readfirstlane","v_readlane")) and pv&c.src: n=max(n,1)
        if c.valu and ("permlane" in c.mn or "dpp" in c.text) and pv&c.src: n=max(n,2)
    if p.mfma:
        full={4:8,8:12}[p.passes]; ov={4:6,8:10}[p.passes]; war={4:3,8:7}[p.passes]
        if c.mfma:
            if p.dst&c.srcAB: n=max(n,full)
            if p.dst&c.srcC and not (p.dst==c.srcC and p.passes==c.passes): n=max(n,ov)
            if p.dst&c.dst and not p.dst&c.srcC: n=max(n,full)
        else:
            if p.dst&(c.src|c.dst): n=max(n,full)
            if c.valu and p.srcC&c.dst: n=max(n,war)
    if p.salu and ("m",0) in p.dst and c.ldsdma: n=max(n,1)
    if p.store_data and p.store_data&c.dst: n=max(n,2)
    return n

class Asm:
    def __init__(self):
        self.out=[]; self.hist=[]; self.pos=0
    def raw(self,s): self.out.append(s)
    def label(self,name):
        self.out.append(name+":")
    def flush_hazards(self):
        self("s_nop 15")
    def __call__(self,text):
        for line in text.strip().split("\n"):
            line=line.strip()
            if not line: continue
            if line.startswith(";"):
                self.out.append("    "+line); continue
            if line.endswith(":"):
                self.out.append(line); continue
            if Asm.STMOD and line.startswith("global_store") and "s[62:63]" not in line and "nosc" not in line:
                line=line.split(";")[0].rstrip()+" "+Asm.STMOD
            ins=Ins(line)
            req=0
            for (ppos,p) in self.hist:
                d=self.pos-ppos
                n=need(p,ins)
                if n>d: req=max(req,n-d)
            while req>0:
                k=min(req,16)
                self.out.append(f"    s_nop {k-1}"); self.pos+=k; req-=k
            self.out.append("    "+line)
            self.pos+=ins.states
            self.hist.append((self.pos,ins))
            self.hist=[h for h in self.hist if self.pos-h[0]<24]
    STAMPS=False
    STMOD=""
    def stamp(self,i):
        if not Asm.STAMPS: return
        self(f"s_memtime s[{64+2*i}:{65+2*i}]")
        self("s_waitcnt lgkmcnt(0)")
        self.nst=max(getattr(self,'nst',0),i+1)
    def dump_stamps(self,wg,tag,wave=0,base=0):
        if not Asm.STAMPS: return
        n=self.nst; self.nst=0
        self(f"s_memrealtime s[{64+2*n}:{65+2*n}]")
        self(f"s_load_dwordx2 s[62:63], s[0:1], 104")
        self(f"s_waitcnt lgkmcnt(0)")
        self(f"s_cmp_eq_u32 s2, {wg}")
        self(f"s_cbranch_scc0 STD_{tag}")
        self(f"s_cmp_eq_u32 s3, {wave}")
        self(f"s_cbranch_scc0 STD_{tag}")
        self(f"s_mov_b64 exec, 1")
        self(f"v_mov_b32 v1, 0")
        for i in range(n+1):
            self(f"v_mov_b32 v2, s{64+2*i}")
            self(f"global_store_dword v1, v2, s[62:63] offset:{base+4*i}")
        self.label(f"STD_{tag}")
    def wg_begin(self):
        if not Asm.STAMPS: return
        self("s_memrealtime s[98:99]")
        self("s_waitcnt lgkmcnt(0)")
    def wg_end(self,kidx,tag):
        if not Asm.STAMPS: return
        self("s_waitcnt vmcnt(0)")
        self("s_memrealtime s[100:101]")
        self("s_waitcnt lgkmcnt(0)")
        self("s_cmp_eq_u32 s3, 0")
        self(f"s_cbranch_scc0 WGE_{tag}")
        self("s_mov_b64 exec, 1")
        self("s_lshl_b32 s97, s2, 3")
        self(f"s_add_u32 s97, s97, {0x3000000+kidx*4096}")
        self("v_mov_b32 v1, s97")
        self("v_mov_b32 v2, s98")
        self("v_mov_b32 v3, s100")
        self("global_store_dwordx2 v1, v[2:3], s[32:33]")
        self("s_mov_b64 exec, -1")
        self.label(f"WGE_{tag}")
    def text(self): return "\n".join(self.out)+"\n"

def vr(a,n=1): return f"v{a}" if n==1 else f"v[{a}:{a+n-1}]"
def ar(a,n=1): return f"a{a}" if n==1 else f"a[{a}:{a+n-1}]"
def sr(a,n=1): return f"s{a}" if n==1 else f"s[{a}:{a+n-1}]"
```

```python
import sys, os
from asmlib import *

NAME="sequential_preLN__ssm_conv_s4__dense_activation_relu__prompt"
TP=4352
WS_XT=0x000000; WS_ST=0x200000; WS_KR=0x240000; WS_HT=0x400000; WS_HR=0x600000; WS_HF=0x800000
WS_W1F=0x1000000; WS_W2F=0x1200000; WCP=0

def kd(name,vgpr,sgpr,accum):
    if Asm.STAMPS: sgpr=102
    return f""".section .rodata,"a"
.p2align 6
.amdhsa_kernel {name}
  .amdhsa_next_free_vgpr {vgpr}
  .amdhsa_next_free_sgpr {sgpr}
  .amdhsa_accum_offset {accum}
  .amdhsa_group_segment_fixed_size 0
  .amdhsa_kernarg_size 120
  .amdhsa_user_sgpr_count 2
  .amdhsa_user_sgpr_kernarg_segment_ptr 1
  .amdhsa_system_sgpr_workgroup_id_x 1
.end_amdhsa_kernel
.text
"""
def head(name):
    return f""".globl {name}
.p2align 8
.type {name},@function
{name}:
"""
def cmul(a,dst,X,Y,T):
    a(f"v_pk_mul_f32 {vr(T,2)}, {vr(X,2)}, {vr(Y,2)} op_sel:[0,0] op_sel_hi:[0,1]")
    a(f"v_pk_fma_f32 {vr(dst,2)}, {vr(X,2)}, {vr(Y,2)}, {vr(T,2)} op_sel:[1,1,0] op_sel_hi:[1,0,1] neg_lo:[1,0,0]")

def build_sel(a,lane,SL,SH,t0,t1,t2):
    a(f"v_and_b32 {vr(t0)}, 15, {vr(lane)}")
    a(f"v_lshrrev_b32 {vr(t1)}, 4, {vr(lane)}")
    a(f"v_lshrrev_b32 {vr(t2)}, 3, {vr(t0)}")
    a(f"v_sub_u32 {vr(t1)}, {vr(t1)}, {vr(t2)}")
    a(f"v_and_b32 {vr(t2)}, 1, {vr(t0)}")
    a(f"v_lshlrev_b32 {vr(t2)}, 4, {vr(t2)}")
    a(f"v_mov_b32 {vr(SL)}, 0x3f80")
    a(f"v_lshlrev_b32 {vr(t2)}, {vr(t2)}, {vr(SL)}")
    a(f"v_bfe_u32 {vr(t0)}, {vr(t0)}, 1, 2")
    a(f"v_lshlrev_b32 {vr(t1)}, 2, {vr(t1)}")
    a(f"v_add_u32 {vr(t0)}, {vr(t0)}, {vr(t1)}")
    for r in range(4):
        a(f"v_cmp_eq_u32 vcc, {r}, {vr(t0)}")
        a(f"v_cndmask_b32 {vr(SL+r)}, 0, {vr(t2)}, vcc")
    for r in range(4):
        a(f"v_cmp_eq_u32 vcc, {8+r}, {vr(t0)}")
        a(f"v_cndmask_b32 {vr(SH+r)}, 0, {vr(t2)}, vcc")

def xreduce(a,v,t):
    a(f"v_mov_b32 {vr(t)}, {vr(v)}")
    a(f"v_permlane16_swap_b32 {vr(v)}, {vr(t)}")
    a(f"v_add_f32 {vr(v)}, {vr(v)}, {vr(t)}")
    a(f"v_mov_b32 {vr(t)}, {vr(v)}")
    a(f"v_permlane32_swap_b32 {vr(v)}, {vr(t)}")
    a(f"v_add_f32 {vr(v)}, {vr(v)}, {vr(t)}")

def rnd_unpack(a,dlo,dhi,src):
    a(f"v_lshlrev_b32 {vr(dlo)}, 16, {vr(src)}")
    a(f"v_and_b32 {vr(dhi)}, s15, {vr(src)}")

def xpose8(a,b,O):
    for q in range(4):
        for p in range(4):
            a(f"v_perm_b32 {vr(O+4*(2*q)+p)}, {vr(b+4*(2*p+1)+q)}, {vr(b+4*(2*p)+q)}, s12")
            a(f"v_perm_b32 {vr(O+4*(2*q+1)+p)}, {vr(b+4*(2*p+1)+q)}, {vr(b+4*(2*p)+q)}, s13")

def tile_ids(a):
    a("""
    s_and_b32 s4, s2, 7
    s_lshr_b32 s6, s2, 3
    s_mul_i32 s7, s6, 37
    s_lshr_b32 s7, s7, 8
    s_mul_i32 s8, s7, 7
    s_sub_u32 s5, s6, s8
    s_lshl_b32 s4, s4, 2
    s_add_u32 s4, s4, s7
    """)

def gen_k1():
    a=Asm()
    a.raw(head("k1_kernel"))
    a.wg_begin()
    a("""
    s_cmp_ge_u32 s2, 256
    s_cbranch_scc1 K1_END
    s_load_dwordx16 s[16:31], s[0:1], 0
    s_load_dwordx2 s[32:33], s[0:1], 112
    s_load_dwordx4 s[36:39], s[0:1], 80
    s_load_dwordx2 s[34:35], s[0:1], 104
    s_load_dwordx2 s[60:61], s[0:1], 64
    v_lshrrev_b32 v1, 6, v0
    v_and_b32 v2, 63, v0
    v_readfirstlane_b32 s3, v1
    s_cmp_lt_u32 s2, 32
    s_cbranch_scc1 K1_LN
    s_sub_u32 s58, s2, 32
    """)
    PITCH=544; LO=16*PITCH; REG=2*LO
    KB=[8*REG, 8*REG+7552]; UB=[0,8704]; CP=4288; YB0=17408
    a(f"""
    s_lshr_b32 s4, s3, 2               ; c
    s_bfe_u32 s5, s3, 0x10001          ; half
    s_and_b32 s56, s3, 1               ; role
    s_lshl_b32 s6, s58, 1
    s_add_u32 s6, s6, s4
    s_lshl_b32 s7, s6, 9
    s_lshl_b32 s8, s5, 8
    s_add_u32 s7, s7, s8
    v_lshlrev_b32 v3, 2, v2
    v_add_u32 v3, s7, v3
    s_lshl_b32 s10, s58, 2
    v_mov_b32 v40, 0
    v_mov_b32 v41, 0
    v_mov_b32 v42, 0
    v_mov_b32 v43, 0
    v_lshlrev_b32 v44, 4, v0
    v_add_u32 v44, {KB[0]}, v44
    v_cmp_gt_u32 vcc, 150, v0
    s_and_saveexec_b64 s[12:13], vcc
    ds_write_b128 v44, v[40:43]
    ds_write_b128 v44, v[40:43] offset:7552
    s_mov_b64 exec, s[12:13]
    s_waitcnt lgkmcnt(0)
    """)
    a.stamp(0)
    a(f"""
    global_load_dword v10, v3, s[18:19]
    global_load_dword v11, v3, s[20:21]
    global_load_dword v12, v3, s[22:23]
    global_load_dword v13, v3, s[24:25]
    global_load_dword v14, v3, s[26:27]
    global_load_dword v15, v3, s[28:29]
    s_load_dword s9, s[30:31], s10
    s_load_dword s59, s[60:61], s10
    s_lshl_b32 s40, s58, 3
    s_add_u32 s40, s40, s3
    s_min_u32 s40, s40, 1567
    s_cmp_ge_u32 s40, 784
    s_cselect_b32 s41, 784, 0
    s_sub_u32 s42, s40, s41            ; U'
    s_mul_i32 s43, s42, 4682
    s_lshr_b32 s43, s43, 16            ; a = U'/14
    s_mul_i32 s44, s43, 14
    s_sub_u32 s44, s42, s44            ; b = U'%14
    s_mov_b32 s45, 3584
    s_mov_b32 s46, 64
    s_mov_b32 s47, {32*3584}
    s_mov_b32 s48, {28*1024}
    s_mov_b32 s49, 1024
    s_mov_b32 s50, {14*1024}
    s_mov_b32 s51, {WS_W1F}
    s_mov_b32 s52, s36
    s_mov_b32 s53, s37
    s_cmp_lt_u32 s40, 784
    s_cbranch_scc1 K1_WSEL
    s_mov_b32 s45, 896
    s_mov_b32 s46, {32*896}
    s_mov_b32 s47, 64
    s_mov_b32 s48, 1024
    s_mov_b32 s49, {112*1024}
    s_mov_b32 s50, {56*1024}
    s_mov_b32 s51, {WS_W2F}
    s_mov_b32 s52, s38
    s_mov_b32 s53, s39
K1_WSEL:
    s_mul_i32 s54, s43, s46
    s_mul_i32 s55, s44, s47
    s_add_u32 s54, s54, s55
    s_mul_i32 s55, s43, s48
    s_mul_i32 s41, s44, s49
    s_add_u32 s55, s55, s41
    s_add_u32 s55, s55, s51
    v_and_b32 v5, 15, v2
    v_lshrrev_b32 v6, 4, v2
    v_lshrrev_b32 v237, 2, v5
    v_lshlrev_b32 v237, 3, v237
    v_and_b32 v236, 3, v5
    v_add_u32 v236, v236, v237
    v_mul_lo_u32 v236, v236, s45
    v_lshl_add_u32 v236, v6, 4, v236
    v_add_u32 v236, s54, v236
    s_lshl_b32 s41, s45, 2
    v_add_u32 v237, s41, v236
    s_mul_i32 s11, s3, {REG}
    s_and_b32 s57, s3, 6
    s_mul_i32 s57, s57, {REG}          ; G region
    v_lshlrev_b32 v4, 3, v2
    v_add_u32 v4, s11, v4
    v_mul_u32_u24 v7, {PITCH}, v5
    v_lshl_add_u32 v7, v6, 4, v7
    v_add_u32 v9, s57, v7
    v_add_u32 v7, s11, v7
    s_waitcnt lgkmcnt(0)
    s_lshl_b32 s12, s9, 16
    s_and_b32 s13, s9, 0xffff0000
    s_cmp_eq_u32 s4, 0
    s_cselect_b32 s9, s12, s13
    s_mov_b32 s12, 0x3fb8aa3b
    s_mov_b32 s13, 0x32a57060
    s_mov_b32 s14, 0x3f317218
    s_mov_b32 s15, 0xffff0000
    v_mov_b32 v16, s9
    v_mul_f32 v17, s12, v16
    v_fma_f32 v18, v16, s12, -v17
    v_fma_f32 v18, v16, s13, v18
    v_exp_f32 v17, v17
    v_mul_f32 v18, s14, v18
    v_fma_f32 v17, v17, v18, v17
    v_cvt_pk_bf16_f32 v17, v17, v17
    v_and_b32 v16, s15, v17
    s_waitcnt vmcnt(0)
    global_load_dwordx4 v[240:243], v236, s[52:53]
    global_load_dwordx4 v[244:247], v237, s[52:53]
    v_mul_u32_u24 v236, 3584, v0
    s_lshl_b32 s41, s58, 2
    v_add_u32 v236, s41, v236
    v_mov_b32 v252, v236
    """)
    a.stamp(1)
    P=[20,22]; CB=[24,26]; Z1=[28,30]; Z8=[32,34]; Z128=[36,38]
    E={k:[40+4*(k-2),42+4*(k-2)] for k in range(2,8)}
    E[1]=Z1
    CUR=[64,66]; V=[68,70]; T=[72,74]; U=[76,78]; HH=80; LL=82
    TM=84; GF=96; AF=160; D=224
    def zexp(j,l,Z):
        if l==1:
            a(f"v_exp_f32 {vr(TM+6)}, {vr(P[j])}")
            a(f"v_fract_f32 {vr(TM+7)}, {vr(P[j]+1)}")
        else:
            lit = {2:"2.0",8:"0x41000000",128:"0x43000000"}[l]
            a(f"v_mul_f32 {vr(TM+6)}, {lit}, {vr(P[j])}")
            a(f"v_mul_f32 {vr(TM+7)}, {lit}, {vr(P[j]+1)}")
            a(f"v_exp_f32 {vr(TM+6)}, {vr(TM+6)}")
            a(f"v_fract_f32 {vr(TM+7)}, {vr(TM+7)}")
        a(f"v_cos_f32 {vr(TM+8)}, {vr(TM+7)}")
        a(f"v_sin_f32 {vr(TM+9)}, {vr(TM+7)}")
        a(f"v_mul_f32 {vr(Z[j])}, {vr(TM+6)}, {vr(TM+8)}")
        a(f"v_mul_f32 {vr(Z[j]+1)}, {vr(TM+6)}, {vr(TM+9)}")
    for j in range(2):
        def unp(dst,src):
            if j==0: a(f"v_lshlrev_b32 {vr(dst)}, 16, {vr(src)}")
            else: a(f"v_and_b32 {vr(dst)}, s15, {vr(src)}")
        unp(TM,10); unp(TM+1,11); unp(TM+2,12); unp(TM+3,13); unp(TM+4,14); unp(TM+5,15)
        a(f"v_mul_f32 {vr(TM)}, v16, {vr(TM)}")
        a(f"v_mul_f32 {vr(TM+1)}, v16, {vr(TM+1)}")
        a(f"v_mul_f32 {vr(TM+2)}, v16, {vr(TM+2)}")
        a(f"v_mul_f32 {vr(TM+3)}, v16, {vr(TM+3)}")
        a(f"v_mul_f32 {vr(P[j])}, s12, {vr(TM)}")
        a(f"v_mul_f32 {vr(P[j]+1)}, 0.15915494, {vr(TM+1)}")
        cmul(a,CB[j],TM+4,TM+2,T[j])
        zexp(j,128,Z128)
    def emit_row(Vr,row,neg):
        ng="-" if neg else ""
        emit_row.n+=1
        if emit_row.n in (3,8,13,18) :
            g=(3,8,13,18).index(emit_row.n)
            a(f"global_load_dword {vr(248+g)}, v252, s[16:17] offset:{896*g}")
        for j in range(2):
            a(f"v_cvt_pk_bf16_f32 {vr(HH+j)}, {vr(Vr[j])}, {ng}{vr(Vr[j]+1)}")
        a(f"ds_write_b64 v4, {vr(HH,2)} offset:{row*PITCH}")
        for j in range(2):
            a(f"v_lshlrev_b32 {vr(U[j])}, 16, {vr(HH+j)}")
            a(f"v_and_b32 {vr(U[j]+1)}, s15, {vr(HH+j)}")
            a(f"v_pk_add_f32 {vr(U[j],2)}, {vr(Vr[j],2)}, {vr(U[j],2)} neg_lo:[0,1] neg_hi:[{1 if neg else 0},1]")
            a(f"v_cvt_pk_bf16_f32 {vr(LL+j)}, {vr(U[j])}, {vr(U[j]+1)}")
        a(f"ds_write_b64 v4, {vr(LL,2)} offset:{LO+row*PITCH}")
    def read_G():
        for ks in range(8):
            a(f"ds_read_b128 {vr(GF+8*ks,4)}, v9 offset:{64*ks}")
            a(f"ds_read_b128 {vr(GF+8*ks+4,4)}, v9 offset:{LO+64*ks}")
    def read_A():
        for ks in range(8):
            a(f"ds_read_b128 {vr(AF+8*ks,4)}, v7 offset:{64*ks}")
            a(f"ds_read_b128 {vr(AF+8*ks+4,4)}, v7 offset:{LO+64*ks}")
    def mfma_tile(rt):
        for ks in range(8):
            a(f"s_waitcnt lgkmcnt({14-2*ks})")
            c = "0" if ks==0 else vr(D+4*rt,4)
            a(f"v_mfma_f32_16x16x32_bf16 {vr(D+4*rt,4)}, {vr(AF+8*ks,4)}, {vr(GF+8*ks,4)}, {c}")
            a(f"v_mfma_f32_16x16x32_bf16 {vr(D+4*rt,4)}, {vr(AF+8*ks,4)}, {vr(GF+8*ks+4,4)}, {vr(D+4*rt,4)}")
            a(f"v_mfma_f32_16x16x32_bf16 {vr(D+4*rt,4)}, {vr(AF+8*ks+4,4)}, {vr(GF+8*ks,4)}, {vr(D+4*rt,4)}")
    def side_job():
        S0=AF; S1=AF+4; O=AF+8
        a(f"""
        s_cmp_ge_u32 s58, 196
        s_cbranch_scc1 K1_WDONE{side_job.n}
        v_lshrrev_b32 v236, 2, v5
        v_and_b32 v237, 1, v5
        v_lshlrev_b32 v237, 4, v237
        v_mov_b32 v238, 0x3f80
        v_lshlrev_b32 v237, v237, v238
        v_cmp_eq_u32 vcc, v236, v6
        v_cndmask_b32 v237, 0, v237, vcc
        v_bfe_u32 v238, v5, 1, 1
        v_cmp_eq_u32 vcc, 0, v238
        v_cndmask_b32 {vr(S0)}, 0, v237, vcc
        v_cndmask_b32 {vr(S0+1)}, v237, 0, vcc
        v_mov_b32 {vr(S0+2)}, 0
        v_mov_b32 {vr(S0+3)}, 0
        v_mov_b32 {vr(S1)}, 0
        v_mov_b32 {vr(S1+1)}, 0
        v_mov_b32 {vr(S1+2)}, {vr(S0)}
        v_mov_b32 {vr(S1+3)}, {vr(S0+1)}
        v_lshlrev_b32 v236, 4, v2
        v_add_u32 v236, s55, v236
        v_add_u32 v237, s50, v236
        s_waitcnt vmcnt(0)
        """)
        for par,S in enumerate((S0,S1)):
            a(f"v_mfma_f32_16x16x32_bf16 {vr(O+8*par,4)}, v[240:243], {vr(S,4)}, 0")
            a(f"v_mfma_f32_16x16x32_bf16 {vr(O+8*par+4,4)}, v[244:247], {vr(S,4)}, 0")
        for par in range(2):
            for q in range(4):
                a(f"v_cvt_pk_bf16_f32 {vr(O+16+4*par+q)}, {vr(O+8*par+2*q)}, {vr(O+8*par+2*q+1)}")
            a(f"global_store_dwordx4 {vr(236+par)}, {vr(O+16+4*par,4)}, s[32:33]")
        a.label(f"K1_WDONE{side_job.n}")
        a("s_nop 1")
        side_job.n+=1
    side_job.n=0
    H=CUR
    a("""
    s_cmp_eq_u32 s56, 1
    s_cbranch_scc1 K1_RB
    """)
    emit_row.n=0
    for j in range(2): zexp(j,8,Z8)
    for j in range(2):
        a(f"v_mov_b32 {vr(CUR[j])}, 1.0")
        a(f"v_mov_b32 {vr(CUR[j]+1)}, 0")
    emit_row(CUR,0,False)
    emit_row(Z8,1,False)
    for g in range(2,16):
        for j in range(2):
            cmul(a,CUR[j], Z8[j] if g==2 else CUR[j], Z8[j], T[j])
        emit_row(CUR,g,False)
    for j in range(2): zexp(j,1,Z1)
    for k in range(2,8):
        for j in range(2):
            cmul(a,E[k][j],E[k-1][j],Z1[j],T[j])
    a.stamp(2)
    a("s_waitcnt lgkmcnt(0)\ns_barrier")
    read_G()
    a("s_waitcnt lgkmcnt(0)\ns_barrier")
    a.stamp(3)
    for i in range(2):
        src = CB if i==0 else H
        if i==1:
            for j in range(2): cmul(a,H[j],CB[j],Z128[j],T[j])
        emit_row(src,8*i,True)
        for k in range(1,8):
            for j in range(2): cmul(a,V[j],src[j],E[k][j],T[j])
            emit_row(V,8*i+k,True)
    a.stamp(4)
    read_A()
    mfma_tile(0)
    a(f"""
    v_lshlrev_b32 v8, 5, v5
    v_add_u32 v8, s11, v8
    v_lshrrev_b32 v9, 1, v6
    v_lshlrev_b32 v9, 9, v9
    v_and_b32 v10, 1, v6
    v_lshlrev_b32 v10, 4, v10
    v_add3_u32 v9, v8, v9, v10
    """)
    for r in range(4): a(f"ds_write_b32 v9, {vr(D+r)} offset:{4*r}")
    side_job()
    a("s_branch K1_EXP")
    a.label("K1_RB")
    emit_row.n=0
    for j in range(2): zexp(j,2,E[2])
    for j in range(2): cmul(a,E[4][j],E[2][j],E[2][j],T[j])
    for j in range(2): cmul(a,E[6][j],E[4][j],E[2][j],T[j])
    for j in range(2): cmul(a,H[j],CB[j],Z128[j],T[j])
    for i in range(2,8):
        for j in range(2): cmul(a,H[j],H[j],Z128[j],T[j])
        if i<4:
            g=i-2
            emit_row(H,4*g,True)
            for r in range(1,4):
                for j in range(2): cmul(a,V[j],H[j],E[2*r][j],T[j])
                emit_row(V,4*g+r,True)
        else:
            r=i-4
            emit_row(H,8+r,True)
            for j in range(2): cmul(a,V[j],H[j],E[4][j],T[j])
            emit_row(V,12+r,True)
    a.stamp(2)
    a("s_waitcnt lgkmcnt(0)\ns_barrier")
    read_G()
    a("s_waitcnt lgkmcnt(0)\ns_barrier")
    a.stamp(3)
    read_A()
    mfma_tile(1)
    a.stamp(4)
    for i in range(8,17):
        for j in range(2): cmul(a,H[j],H[j],Z128[j],T[j])
        emit_row(H,i-8,True)
    read_A()
    mfma_tile(2)
    a(f"""
    v_lshlrev_b32 v8, 5, v5
    v_add_u32 v8, s11, v8
    v_lshlrev_b32 v10, 9, v6
    v_add_u32 v10, 1024, v10
    v_lshlrev_b32 v11, 4, v6
    v_add_u32 v11, {2048-32}, v11
    v_mov_b32 v12, 8
    v_mov_b32 v13, 512
    v_cmp_gt_u32 vcc, 2, v6
    v_cndmask_b32 v10, v11, v10, vcc
    v_cndmask_b32 v12, v13, v12, vcc
    v_add_u32 v10, v8, v10
    v_add_u32 v11, v10, v12
    v_add_u32 v13, v11, v12
    v_add_u32 v14, v13, v12
    v_lshlrev_b32 v15, 11, v6
    v_add_u32 v15, 4096, v15
    v_add_u32 v15, v8, v15
    """)
    for r,ad in enumerate((10,11,13,14)): a(f"ds_write_b32 {vr(ad)}, {vr(D+4+r)}")
    for r in range(4): a(f"ds_write_b32 v15, {vr(D+8+r)} offset:{512*r}")
    a.label("K1_EXP")
    a.stamp(5)
    a(f"""
    v_lshrrev_b32 v8, 8, v0
    v_and_b32 v9, 255, v0
    v_mul_u32_u24 v10, {4*REG}, v8
    v_add_u32 v14, {REG}, v10
    v_lshlrev_b32 v11, 1, v9
    v_xor_b32 v11, 63, v11
    v_cmp_gt_u32 vcc, 128, v9
    v_cndmask_b32 v15, v14, v10, vcc
    """)
    LA=20
    for i in range(4):
        a(f"v_add_u32 v12, {512*i}, v11")
        a(f"v_add_u32 v13, {512*i-1}, v11")
        a(f"v_cvt_f32_u32 v12, v12")
        a(f"v_cvt_f32_u32 v13, v13")
        a(f"v_cvt_pk_bf16_f32 v12, v12, v13")
        a(f"v_lshlrev_b32 v13, 16, v12")
        a(f"v_and_b32 v12, s15, v12")
        a(f"v_cvt_u32_f32 v13, v13")
        a(f"v_cvt_u32_f32 v12, v12")
        b="v15" if i==0 else "v14"
        a(f"v_lshl_add_u32 {vr(LA+2*i)}, v13, 2, {b}")
        a(f"v_lshl_add_u32 {vr(LA+2*i+1)}, v12, 2, {b}")
    a(f"""
    v_lshrrev_b32 v12, 5, v9
    v_mul_u32_u24 v12, 160, v12
    v_and_b32 v13, 31, v9
    v_lshl_add_u32 v12, v13, 2, v12
    v_mul_u32_u24 v13, 7552, v8
    v_add_u32 v12, v12, v13
    v_add_u32 v12, {KB[0]+15*160}, v12
    s_waitcnt lgkmcnt(0)
    s_barrier
    """)
    a.stamp(6)
    R0=40;R1=56
    for i in range(8):
        a(f"ds_read_b32 {vr(R0+i)}, {vr(LA+i)}")
        a(f"ds_read_b32 {vr(R1+i)}, {vr(LA+i)} offset:{2*REG}")
        if i==6: a("s_waitcnt lgkmcnt(0)")
    a("s_waitcnt lgkmcnt(0)")
    for i in range(4):
        a(f"v_add_f32 {vr(R0+2*i)}, {vr(R0+2*i)}, {vr(R1+2*i)}")
        a(f"v_add_f32 {vr(R0+2*i+1)}, {vr(R0+2*i+1)}, {vr(R1+2*i+1)}")
        a(f"v_cvt_pk_bf16_f32 {vr(72+i)}, {vr(R0+2*i)}, {vr(R0+2*i+1)}")
        a(f"ds_write_b32 v12, {vr(72+i)} offset:{8*160*i}")
    a("s_cmp_eq_u32 s56, 0\ns_cbranch_scc1 K1_NOSJ")
    side_job()
    a.label("K1_NOSJ")
    a.stamp(7)
    a(f"""
    v_lshlrev_b32 v5, 5, v0
    v_add_u32 v5, {WS_ST}, v5
    s_cmp_lg_u32 s3, 0
    s_cbranch_scc1 K1_POLLED
    v_mov_b32 v10, 0
    s_mov_b32 s6, 0
K1_POLL:
    global_load_dword v11, v10, s[34:35] offset:128 sc1
    s_waitcnt vmcnt(0)
    v_readfirstlane_b32 s7, v11
    s_cmp_eq_u32 s7, 1
    s_cbranch_scc1 K1_POLLED
    s_sleep 2
    s_add_u32 s6, s6, 1
    s_cmp_lt_u32 s6, 0x100000
    s_cbranch_scc1 K1_POLL
K1_POLLED:
    s_waitcnt lgkmcnt(0)
    s_barrier
    """)
    a.stamp(8)
    a(f"""
    global_load_dwordx4 v[24:27], v5, s[32:33] sc1
    global_load_dwordx4 v[28:31], v5, s[32:33] offset:16 sc1
    v_mov_b32 v40, 0
    v_mov_b32 v41, 0
    v_mov_b32 v42, 0
    v_mov_b32 v43, 0
    v_lshlrev_b32 v6, 3, v0
    v_lshlrev_b32 v7, 4, v0
    v_cmp_gt_u32 vcc, 8, v0
    s_and_saveexec_b64 s[12:13], vcc
    ds_write_b128 v7, v[40:43]
    ds_write_b128 v7, v[40:43] offset:{CP}
    ds_write_b128 v7, v[40:43] offset:{UB[1]}
    ds_write_b128 v7, v[40:43] offset:{UB[1]+CP}
    s_mov_b64 exec, s[12:13]
    s_mul_i32 s6, s4, {UB[1]}
    s_and_b32 s5, s3, 3
    v_and_b32 v16, 15, v2
    v_lshrrev_b32 v17, 4, v2
    v_lshl_add_u32 v18, v17, 3, v16
    v_add_u32 v18, 1, v18
    v_and_b32 v19, 1, v18
    v_mul_u32_u24 v19, {CP}, v19
    v_lshrrev_b32 v18, 1, v18
    v_lshl_add_u32 v18, v18, 2, v19
    v_add_u32 v56, s6, v18
    v_add_u32 v57, 1024, v56
    v_add_u32 v58, 2048, v56
    v_add_u32 v59, 3072, v56
    v_add_u32 v60, 4096, v56
    v_mul_u32_u24 v61, 160, v16
    v_lshl_add_u32 v61, v17, 4, v61
    s_mul_i32 s6, s4, 7552
    s_add_u32 s6, s6, {KB[0]}
    v_add_u32 v61, s6, v61
    v_mul_u32_u24 v62, 272, v16
    v_lshl_add_u32 v62, v17, 4, v62
    s_mul_i32 s6, s3, 8704
    s_add_u32 s6, s6, {YB0}
    v_add_u32 v62, s6, v62
    s_lshl_b32 s12, s59, 16
    s_and_b32 s13, s59, s15
    s_waitcnt vmcnt(0)
    """)
    a.stamp(9)
    for c in range(2):
        for p in range(2):
            for k in range(2):
                r=2*p+k
                if c==0: a(f"v_lshlrev_b32 {vr(40+k)}, 16, {vr(248+r)}")
                else: a(f"v_and_b32 {vr(40+k)}, s15, {vr(248+r)}")
                a(f"v_sub_f32 {vr(40+k)}, {vr(40+k)}, {vr(24+2*r)}")
            a(f"v_cvt_pk_bf16_f32 v40, v40, v41")
            rnd_unpack(a,41,42,40)
            a(f"v_mul_f32 v41, v41, {vr(25+4*p)}")
            a(f"v_mul_f32 v42, v42, {vr(27+4*p)}")
            a(f"v_cvt_pk_bf16_f32 {vr(44+2*c+p)}, v41, v42")
        u=44+2*c
        a(f"ds_write_b64 v6, {vr(u,2)} offset:{UB[c]+128}")
        a(f"v_alignbit_b32 v52, {vr(u+1)}, {vr(u)}, 16")
        a(f"ds_write_b32 v6, v52 offset:{UB[c]+CP+128}")
        a(f"ds_write_b16_d16_hi v6, {vr(u+1)} offset:{UB[c]+CP+128+4}")
        a(f"ds_write_b16 v6, {vr(u)} offset:{UB[c]+CP+128-2}")
    a("""
    s_waitcnt lgkmcnt(0)
    s_barrier
    """)
    a.stamp(10)
    a("""
    s_cmp_eq_u32 s5, 1
    s_cbranch_scc1 K2_Q1
    s_cmp_eq_u32 s5, 2
    s_cbranch_scc1 K2_Q2
    s_cmp_eq_u32 s5, 3
    s_cbranch_scc1 K2_Q3
    """)
    AFR=64; BFR=104; ACC=136
    def cts(e): return [0,1] if e<16 else [1]
    def loadsA(s_):
        base=56+(s_//32); o=8*(s_%32); r=AFR+4*(s_%10)
        return [f"ds_read2_b32 {vr(r,2)}, {vr(base)} offset0:{o} offset1:{o+1}",
                f"ds_read2_b32 {vr(r+2,2)}, {vr(base)} offset0:{o+2} offset1:{o+3}"]
    def loadsB(e):
        L=[]
        for kk in range(2):
            for ct in cts(e):
                r=BFR+16*(e&1)+4*(2*kk+ct)
                L.append(f"ds_read_b128 {vr(r,4)}, v61 offset:{(16*ct-e+15)*160+64*kk}")
        return L
    def conv(e0,e1):
        for s_ in range(4*e0,4*e0+6):
            for l in loadsA(s_): a(l)
        for l in loadsB(e0): a(l)
        first=set()
        if e0>=16:
            for mt in range(4):
                for r in range(4): a(f"v_mov_b32 {vr(ACC+4*(2*mt)+r)}, 0")
        for e in range(e0,e1):
            L=[]
            if e+1<e1:
                L+=loadsB(e+1)
                for s_ in range(4*e+6,4*e+10): L+=loadsA(s_)
            a(f"s_waitcnt lgkmcnt(0)")
            M=[]
            for kk in range(2):
                for ct in cts(e):
                    for mt in range(4):
                        acc=ACC+4*(2*mt+ct)
                        c=vr(acc,4) if (mt,ct) in first else "0"
                        first.add((mt,ct))
                        M.append(f"v_mfma_f32_16x16x32_bf16 {vr(acc,4)}, {vr(AFR+4*((4*e+mt+2*kk)%10),4)}, {vr(BFR+16*(e&1)+4*(2*kk+ct),4)}, {c}")
            per = 1 if len(M)>=16 else 2
            for m in M:
                a(m)
                for _ in range(per):
                    if L: a(L.pop(0))
            for l in L: a(l)
    conv(0,6)
    a("s_branch K2_EPI")
    a.label("K2_Q1"); conv(6,12); a("s_branch K2_EPI")
    a.label("K2_Q2"); conv(12,20); a("s_branch K2_EPI")
    a.label("K2_Q3"); conv(20,32)
    a.label("K2_EPI")
    a("s_nop 7")
    a.stamp(11)
    for mt in range(4):
        for ct in range(2):
            a(f"ds_write_b128 v62, {vr(ACC+4*(2*mt+ct),4)} offset:{ct*16*272+mt*64}")
    a(f"""
    v_lshrrev_b32 v16, 4, v0
    v_mul_u32_u24 v18, 57344, v16
    v_mul_u32_u24 v16, 272, v16
    v_and_b32 v17, 15, v0
    v_lshl_add_u32 v16, v17, 4, v16
    v_add_u32 v16, {YB0}, v16
    v_add_u32 v19, {4*8704}, v16
    s_and_b32 s6, s58, 1
    s_lshl_b32 s6, s6, 2
    s_bfe_u32 s7, s58, 0x10002
    s_lshl_b32 s7, s7, 3
    s_or_b32 s6, s6, s7
    v_xor_b32 v17, s6, v17
    v_lshl_add_u32 v18, v17, 3, v18
    s_lshl_b32 s6, s58, 8
    s_add_u32 s6, s6, {WS_HT}
    v_add_u32 v18, s6, v18
    s_waitcnt lgkmcnt(0)
    s_barrier
    """)
    for c in range(2):
        for qd in range(4):
            a(f"ds_read_b128 {vr(64+16*c+4*qd,4)}, {vr(16 if c==0 else 19)} offset:{8704*qd}")
    a("s_waitcnt lgkmcnt(0)")
    a.stamp(12)
    for c in range(2):
        ds="s12" if c==0 else "s13"
        for p in range(2):
            y=64+16*c+2*p
            a(f"v_pk_add_f32 {vr(y,2)}, {vr(y,2)}, {vr(y+4,2)}")
            a(f"v_pk_add_f32 {vr(y+8,2)}, {vr(y+8,2)}, {vr(y+12,2)}")
            a(f"v_pk_add_f32 {vr(y,2)}, {vr(y,2)}, {vr(y+8,2)}")
            a(f"v_cvt_pk_bf16_f32 v40, {vr(y)}, {vr(y+1)}")
            rnd_unpack(a,42,43,44+2*c+p)
            a(f"v_mul_f32 v42, {ds}, v42")
            a(f"v_mul_f32 v43, {ds}, v43")
            a(f"v_cvt_pk_bf16_f32 v42, v42, v43")
            rnd_unpack(a,41,40,40)
            rnd_unpack(a,43,42,42)
            a(f"v_add_f32 v41, v41, v43")
            a(f"v_add_f32 v40, v40, v42")
            a(f"v_cvt_pk_bf16_f32 v40, v41, v40")
            rnd_unpack(a,41,40,40)
            for k,dst in ((0,42),(1,43)):
                if c==0: a(f"v_lshlrev_b32 {vr(dst)}, 16, {vr(248+2*p+k)}")
                else: a(f"v_and_b32 {vr(dst)}, s15, {vr(248+2*p+k)}")
            a(f"v_add_f32 v41, v41, v42")
            a(f"v_add_f32 v40, v40, v43")
            a(f"v_cvt_pk_bf16_f32 {vr(96+2*c+p)}, v41, v40")
        a(f"global_store_dwordx2 v18, {vr(96+2*c,2)}, s[32:33] offset:{128*c}")
    a.stamp(13)
    a.wg_end(0,"k1a")
    a.dump_stamps(100,"k1a",base=32,wave=int(os.environ.get("STW","0")))
    a("s_endpgm")
    a.label("K1_LN")
    XA=8; F=64; SL=232; SH=236
    a(f"""
    s_getpc_b64 s[6:7]
K1_PC0:
    s_sub_u32 s6, s6, K1_PC0-k1_kernel
    s_subb_u32 s7, s7, 0
    v_lshlrev_b32 v1, 4, v0
    global_load_dwordx4 v[200:203], v1, s[6:7]
    v_add_u32 v1, 8192, v1
    global_load_dwordx4 v[204:207], v1, s[6:7]
    v_add_u32 v1, 8192, v1
    v_cmp_gt_u32 vcc, K1_PC0-k1_kernel, v1
    s_and_saveexec_b64 s[8:9], vcc
    global_load_dwordx4 v[208:211], v1, s[6:7]
    s_mov_b64 exec, s[8:9]
    s_lshl_b32 s4, s2, 6
    s_and_b32 s5, s3, 3
    s_lshl_b32 s5, s5, 4
    s_add_u32 s4, s4, s5               ; t0
    s_lshr_b32 s6, s3, 2               ; dh
    v_and_b32 v3, 15, v2
    v_lshrrev_b32 v4, 4, v2
    v_add_u32 v5, s4, v3               ; t
    v_mul_u32_u24 v6, 896, v5
    v_lshl_add_u32 v6, v4, 4, v6
    s_mul_i32 s7, s6, 448
    v_add_u32 v6, s7, v6
    s_mov_b32 s15, 0xffff0000
    s_waitcnt lgkmcnt(0)
    """)
    a.stamp(0)
    for kk in range(7): a(f"global_load_dwordx4 {vr(XA+4*kk,4)}, v6, s[16:17] offset:{64*kk}")
    a(f"""
    s_lshl_b32 s7, s3, 6
    v_lshl_add_u32 v250, v3, 2, s7
    v_xor_b32 v251, 256, v250
    """)
    ACC=240; AC2=242; TT=244; MEAN=246; ST=248
    DD=176
    a("s_waitcnt vmcnt(0)")
    a.stamp(1)
    for i in range(28):
        a(f"v_lshlrev_b32 {vr(F+2*i)}, 16, {vr(XA+i)}")
        a(f"v_and_b32 {vr(F+2*i+1)}, s15, {vr(XA+i)}")
        if i==0: a(f"v_pk_add_f32 {vr(ACC,2)}, {vr(F,2)}, 0")
        else: a(f"v_pk_add_f32 {vr(ACC,2)}, {vr(ACC,2)}, {vr(F+2*i,2)}")
    a.stamp(2)
    a(f"v_add_f32 {vr(ACC)}, {vr(ACC)}, {vr(ACC+1)}")
    xreduce(a,ACC,TT)
    a(f"""
    ds_write_b32 v250, {vr(ACC)}
    s_waitcnt lgkmcnt(0)
    s_barrier
    ds_read_b32 {vr(TT)}, v251
    s_waitcnt lgkmcnt(0)
    v_add_f32 {vr(ACC)}, {vr(ACC)}, {vr(TT)}
    """)
    a(f"v_mul_f32 {vr(MEAN)}, 0x3b124925, {vr(ACC)}")
    a(f"v_mov_b32 {vr(MEAN+1)}, {vr(MEAN)}")
    for i in range(28):
        t=TT if i%2==0 else 252
        a(f"v_pk_add_f32 {vr(t,2)}, {vr(F+2*i,2)}, {vr(MEAN,2)} neg_lo:[0,1] neg_hi:[0,1]")
        if i==0: a(f"v_pk_mul_f32 {vr(AC2,2)}, {vr(t,2)}, {vr(t,2)}")
        else: a(f"v_pk_fma_f32 {vr(AC2,2)}, {vr(t,2)}, {vr(t,2)}, {vr(AC2,2)}")
    a(f"v_add_f32 {vr(AC2)}, {vr(AC2)}, {vr(AC2+1)}")
    xreduce(a,AC2,TT)
    a(f"""
    ds_write_b32 v250, {vr(AC2)} offset:512
    s_waitcnt lgkmcnt(0)
    s_barrier
    ds_read_b32 {vr(TT)}, v251 offset:512
    s_waitcnt lgkmcnt(0)
    v_add_f32 {vr(AC2)}, {vr(AC2)}, {vr(TT)}
    s_cmp_ge_u32 s3, 4
    s_cbranch_scc1 K1_LNE
    v_mul_f32 {vr(AC2)}, 0x3b124925, {vr(AC2)}
    v_cvt_pk_bf16_f32 {vr(TT)}, {vr(MEAN)}, {vr(AC2)}
    v_lshlrev_b32 {vr(ST)}, 16, {vr(TT)}
    v_and_b32 {vr(TT)}, s15, {vr(TT)}
    v_add_f32 {vr(TT)}, 0x3727c5ac, {vr(TT)}
    v_cvt_pk_bf16_f32 {vr(TT)}, {vr(TT)}, {vr(TT)}
    v_and_b32 {vr(TT)}, s15, {vr(TT)}
    v_sqrt_f32 {vr(TT)}, {vr(TT)}
    v_cvt_pk_bf16_f32 {vr(TT)}, {vr(TT)}, {vr(TT)}
    v_and_b32 {vr(TT)}, s15, {vr(TT)}
    v_rcp_f32 {vr(ST+1)}, {vr(TT)}
    v_lshlrev_b32 {vr(TT+1)}, 3, v5
    v_add_u32 {vr(TT+1)}, {WS_ST}, {vr(TT+1)}
    s_mov_b64 exec, 0xffff
    global_store_dwordx2 {vr(TT+1)}, {vr(ST,2)}, s[32:33]
    s_mov_b64 exec, -1
K1_LNE:
    s_waitcnt vmcnt(0)
    s_barrier
    s_cmp_lg_u32 s3, 0
    s_cbranch_scc1 K1_LNX
    v_mov_b32 v1, 0
    v_mov_b32 v2, 1
    s_mov_b64 exec, 1
    global_atomic_add v3, v1, v2, s[34:35] sc0 sc1
    s_waitcnt vmcnt(0)
    v_readfirstlane_b32 s6, v3
    s_cmp_lg_u32 s6, 31
    s_cbranch_scc1 K1_LNY
    global_store_dword v1, v2, s[34:35] offset:128
K1_LNY:
    s_mov_b64 exec, -1
K1_LNX:
    s_getpc_b64 s[6:7]
K1_PC:
    s_add_u32 s6, s6, k3_kernel-K1_PC
    s_addc_u32 s7, s7, 0
    v_lshlrev_b32 v1, 4, v0
    global_load_dwordx4 v[8:11], v1, s[6:7]
    v_add_u32 v1, 8192, v1
    global_load_dwordx4 v[12:15], v1, s[6:7]
    v_add_u32 v1, 8192, v1
    v_cmp_gt_u32 vcc, K4_END-k3_kernel, v1
    s_and_saveexec_b64 s[8:9], vcc
    global_load_dwordx4 v[16:19], v1, s[6:7]
    s_mov_b64 exec, s[8:9]
    """)
    a.stamp(3)
    a.wg_end(0,"k1b")
    a.dump_stamps(10,"k1b",base=160)
    a.label("K1_END")
    a("s_endpgm")
    return a.text()+kd("k1_kernel",256,62,256), "; @launch kernel=k1_kernel grid=(256,1,1) block=(512,1,1) lds=154368"

def gen_k2():
    a=Asm()
    a.raw(head("k2_kernel"))
    a.wg_begin()
    UB=[0,8704]; CP=4288; KB=[17408,24960]; YB=[[32512,41216],[49920,58624]]
    a(f"""
    s_cmp_ge_u32 s2, 224
    s_cbranch_scc1 K2_END
    s_load_dwordx2 s[32:33], s[0:1], 112
    s_load_dwordx2 s[18:19], s[0:1], 64
    s_load_dwordx4 s[20:23], s[0:1], 80
    v_lshrrev_b32 v1, 6, v0
    v_and_b32 v2, 63, v0
    v_readfirstlane_b32 s3, v1
    s_mov_b32 s15, 0xffff0000
    s_mul_i32 s6, s2, {2*TP}
    v_lshlrev_b32 v3, 4, v0            ; 16*tid
    v_add_u32 v3, s6, v3
    s_lshl_b32 s6, s2, 13
    s_add_u32 s6, s6, {WS_KR}
    v_lshlrev_b32 v4, 4, v0
    v_add_u32 v4, s6, v4
    v_lshlrev_b32 v5, 6, v0
    v_add_u32 v5, {WS_ST}, v5
    s_lshl_b32 s10, s2, 2
    s_waitcnt lgkmcnt(0)
    """)
    a.stamp(0)
    a(f"""
    global_load_dwordx4 v[8:11], v3, s[32:33]
    v_add_u32 v6, {TP}, v3
    global_load_dwordx4 v[12:15], v6, s[32:33]
    global_load_dwordx4 v[24:27], v5, s[32:33]
    global_load_dwordx4 v[28:31], v5, s[32:33] offset:16
    global_load_dwordx4 v[32:35], v5, s[32:33] offset:32
    global_load_dwordx4 v[36:39], v5, s[32:33] offset:48
    global_load_dwordx4 v[16:19], v4, s[32:33]
    v_add_u32 v6, 4096, v4
    global_load_dwordx4 v[20:23], v6, s[32:33]
    s_load_dword s9, s[18:19], s10
    """)
    a(f"""
    v_mov_b32 v40, 0
    v_mov_b32 v41, 0
    v_mov_b32 v42, 0
    v_mov_b32 v43, 0
    v_lshlrev_b32 v6, 4, v0
    v_cmp_gt_u32 vcc, 150, v0
    s_and_saveexec_b64 s[34:35], vcc
    ds_write_b128 v6, v[40:43] offset:{KB[0]}
    ds_write_b128 v6, v[40:43] offset:{KB[1]}
    v_cmp_gt_u32 vcc, 8, v0
    s_and_b64 exec, exec, vcc
    ds_write_b128 v6, v[40:43] offset:{UB[0]}
    ds_write_b128 v6, v[40:43] offset:{UB[0]+CP}
    ds_write_b128 v6, v[40:43] offset:{UB[1]}
    ds_write_b128 v6, v[40:43] offset:{UB[1]+CP}
    s_mov_b64 exec, s[34:35]
    v_lshrrev_b32 v7, 3, v0
    v_mul_u32_u24 v7, 160, v7
    v_and_b32 v40, 7, v0
    v_lshl_add_u32 v7, v40, 4, v7
    s_waitcnt vmcnt(2)
    """)
    a.stamp(1)
    X=[8,12]; Uo=[44,48]
    for c in range(2):
        for p in range(4):
            rnd_unpack(a,40,41,X[c]+p)
            a(f"v_sub_f32 v40, v40, {vr(24+4*p)}")
            a(f"v_sub_f32 v41, v41, {vr(26+4*p)}")
            a(f"v_cvt_pk_bf16_f32 v40, v40, v41")
            rnd_unpack(a,41,42,40)
            a(f"v_mul_f32 v41, v41, {vr(25+4*p)}")
            a(f"v_mul_f32 v42, v42, {vr(27+4*p)}")
            a(f"v_cvt_pk_bf16_f32 {vr(Uo[c]+p)}, v41, v42")
    for c in range(2):
        u=Uo[c]
        a(f"ds_write_b128 v6, {vr(u,4)} offset:{UB[c]+128}")
        for k in range(3):
            a(f"v_alignbit_b32 {vr(52+k)}, {vr(u+k+1)}, {vr(u+k)}, 16")
        a(f"ds_write_b96 v6, v[52:54] offset:{UB[c]+CP+128}")
        a(f"ds_write_b16_d16_hi v6, {vr(u+3)} offset:{UB[c]+CP+128+12}")
        a(f"ds_write_b16 v6, {vr(u)} offset:{UB[c]+CP+128-2}")
    a(f"""
    s_waitcnt vmcnt(0)
    ds_write_b128 v7, v[16:19] offset:{KB[0]+15*160}
    ds_write_b128 v7, v[20:23] offset:{KB[1]+15*160}
    s_lshr_b32 s4, s3, 1
    s_and_b32 s5, s3, 1
    v_and_b32 v16, 15, v2
    v_lshrrev_b32 v17, 4, v2
    v_lshl_add_u32 v18, v17, 3, v16
    v_add_u32 v18, 1, v18
    v_and_b32 v19, 1, v18
    v_mul_u32_u24 v19, {CP}, v19
    v_lshrrev_b32 v18, 1, v18
    v_lshl_add_u32 v18, v18, 2, v19
    s_mul_i32 s6, s4, {UB[1]}
    v_add_u32 v20, s6, v18
    v_add_u32 v21, 1024, v20
    v_add_u32 v22, 2048, v20
    v_add_u32 v23, 3072, v20
    v_add_u32 v24, 4096, v20
    v_mul_u32_u24 v25, 160, v16
    v_lshl_add_u32 v25, v17, 4, v25
    s_mul_i32 s6, s4, {KB[1]-KB[0]}
    s_add_u32 s6, s6, {KB[0]}
    v_add_u32 v25, s6, v25
    v_mul_u32_u24 v26, 272, v16
    v_lshl_add_u32 v26, v17, 4, v26
    s_mul_i32 s6, s3, 8704
    s_add_u32 s6, s6, {YB[0][0]}
    v_add_u32 v26, s6, v26
    s_waitcnt lgkmcnt(0)
    s_barrier
    """)
    a.stamp(2)
    a("""
    s_cmp_eq_u32 s5, 1
    s_cbranch_scc1 K2_H1
    """)
    AFR=64; BFR=104; ACC=136
    def loadA(s):
        base=20+(s//32); o=8*(s%32); r=AFR+4*(s%10)
        a(f"ds_read2_b32 {vr(r,2)}, {vr(base)} offset0:{o} offset1:{o+1}")
        a(f"ds_read2_b32 {vr(r+2,2)}, {vr(base)} offset0:{o+2} offset1:{o+3}")
        return 2
    def cts(e): return [0,1] if e<16 else [1]
    def loadB(e):
        n=0
        for kk in range(2):
            for ct in cts(e):
                r=BFR+16*(e&1)+4*(2*kk+ct)
                a(f"ds_read_b128 {vr(r,4)}, v25 offset:{(16*ct-e+15)*160+64*kk}")
                n+=1
        return n
    def conv(e0,e1):
        for s in range(4*e0,4*e0+6): loadA(s)
        loadB(e0)
        first=set()
        for e in range(e0,e1):
            n=0
            if e+1<e1:
                for s in range(4*e+6,4*e+10): n+=loadA(s)
                n+=loadB(e+1)
            a(f"s_waitcnt lgkmcnt({n})")
            for kk in range(2):
                for ct in cts(e):
                    for mt in range(4):
                        acc=ACC+4*(2*mt+ct)
                        c=vr(acc,4) if (mt,ct) in first else "0"
                        first.add((mt,ct))
                        a(f"v_mfma_f32_16x16x32_bf16 {vr(acc,4)}, {vr(AFR+4*((4*e+mt+2*kk)%10),4)}, {vr(BFR+16*(e&1)+4*(2*kk+ct),4)}, {c}")
    conv(0,12)
    a("s_branch K2_EPI")
    a.label("K2_H1")
    conv(12,32)
    a.label("K2_EPI")
    a("s_nop 7")
    a.stamp(3)
    for mt in range(4):
        for ct in range(2):
            a(f"ds_write_b128 v26, {vr(ACC+4*(2*mt+ct),4)} offset:{ct*16*272+mt*64}")
    a(f"""
    v_lshrrev_b32 v16, 3, v0
    v_mul_u32_u24 v16, 272, v16
    v_and_b32 v17, 7, v0
    v_lshl_add_u32 v16, v17, 5, v16
    s_lshl_b32 s12, s9, 16
    s_and_b32 s13, s9, s15
    s_waitcnt lgkmcnt(0)
    s_barrier
    """)
    for c in range(2):
        for hf in range(2):
            a(f"ds_read_b128 {vr(64+16*c+8*hf,4)}, v16 offset:{YB[c][hf]}")
            a(f"ds_read_b128 {vr(64+16*c+8*hf+4,4)}, v16 offset:{YB[c][hf]+16}")
    a("s_waitcnt lgkmcnt(0)")
    a.stamp(4)
    for c in range(2):
        ds = "s12" if c==0 else "s13"
        for p in range(4):
            y0=64+16*c+2*p; y1=y0+8
            a(f"v_add_f32 v40, {vr(y0)}, {vr(y1)}")
            a(f"v_add_f32 v41, {vr(y0+1)}, {vr(y1+1)}")
            a(f"v_cvt_pk_bf16_f32 v40, v40, v41")
            rnd_unpack(a,42,43,Uo[c]+p)
            a(f"v_mul_f32 v42, {ds}, v42")
            a(f"v_mul_f32 v43, {ds}, v43")
            a(f"v_cvt_pk_bf16_f32 v42, v42, v43")
            rnd_unpack(a,41,40,40)
            rnd_unpack(a,43,42,42)
            a(f"v_add_f32 v41, v41, v43")
            a(f"v_add_f32 v40, v40, v42")
            a(f"v_cvt_pk_bf16_f32 v40, v41, v40")
            rnd_unpack(a,41,40,40)
            rnd_unpack(a,42,43,X[c]+p)
            a(f"v_add_f32 v41, v41, v42")
            a(f"v_add_f32 v40, v40, v43")
            a(f"v_cvt_pk_bf16_f32 {vr(96+4*c+p)}, v41, v40")
    a(f"""
    v_lshrrev_b32 v4, 3, v0
    v_mul_u32_u24 v4, 57344, v4
    v_and_b32 v5, 7, v0
    v_lshl_add_u32 v4, v5, 4, v4
    s_lshl_b32 s6, s2, 8
    s_add_u32 s6, s6, {WS_HT}
    v_add_u32 v4, s6, v4
    global_store_dwordx4 v4, v[96:99], s[32:33]
    global_store_dwordx4 v4, v[100:103], s[32:33] offset:128
    """)
    a.stamp(5)
    a.wg_end(1,"k2a")
    a.dump_stamps(100,"k2a")
    a("s_endpgm")
    a.label("K2_END")
    a("s_endpgm")
    return a.text()+kd("k2_kernel",200,40,200), "; @launch kernel=k2_kernel grid=(224,1,1) block=(256,1,1) lds=67328"

def gen_k3():
    a=Asm()
    a.raw(head("k3_kernel"))
    a.wg_begin()
    a(f"""
    s_cmp_ge_u32 s2, 256
    s_cbranch_scc1 K3_END
    s_load_dwordx2 s[32:33], s[0:1], 112
    v_lshrrev_b32 v1, 6, v0
    v_and_b32 v2, 63, v0
    v_readfirstlane_b32 s3, v1
    s_mov_b32 s15, 0xffff0000
    s_cmp_ge_u32 s2, 224
    s_cbranch_scc1 K3_PF
    """)
    tile_ids(a)
    RW=8; F=64; SL=176; SH=180; LNB=57344
    a(f"""
    v_and_b32 v3, 15, v2
    v_lshrrev_b32 v4, 4, v2
    v_lshlrev_b32 v7, 4, v2
    s_lshl_b32 s6, s4, 6
    s_lshl_b32 s7, s3, 4
    s_add_u32 s6, s6, s7               ; s6 = tb
    s_mul_i32 s7, s4, 57344
    s_mul_i32 s8, s3, 14336
    s_add_u32 s7, s7, s8
    s_add_u32 s7, s7, {WS_HT}
    v_add_u32 v5, s7, v7
    v_lshrrev_b32 v184, 2, v3
    v_lshlrev_b32 v185, 3, v184
    v_and_b32 v186, 3, v3
    v_add_u32 v185, v185, v186
    v_lshrrev_b32 v186, 1, v4
    v_lshl_add_u32 v185, v186, 2, v185 ; d0
    v_lshlrev_b32 v185, 7, v185
    v_and_b32 v184, 1, v184
    v_lshlrev_b32 v184, 2, v184
    v_bfe_u32 v186, v3, 1, 1
    v_lshl_add_u32 v184, v186, 1, v184 ; f
    s_lshl_b32 s7, s3, 1
    v_and_b32 v186, 1, v4
    v_add_u32 v186, s7, v186
    v_xor_b32 v186, v186, v184
    v_lshl_add_u32 v215, v186, 4, v185
    s_lshl_b32 s7, s5, 4
    s_lshl_b32 s9, s3, 2
    s_add_u32 s7, s7, s9
    s_mul_i32 s7, s7, {14*1024}
    s_add_u32 s7, s7, {WS_W1F}
    v_add_u32 v208, s7, v7
    v_add_u32 v209, {14*1024}, v208
    v_add_u32 v210, {28*1024}, v208
    v_add_u32 v211, {42*1024}, v208
    s_waitcnt lgkmcnt(0)
    s_mov_b32 s36, s32
    s_mov_b32 s37, s33
    s_mov_b32 s38, {WS_HT+32*57344}
    s_mov_b32 s39, 0x00020000
    """)
    a.stamp(0)
    for i in range(14):
        if i%4==0:
            a(f"s_add_u32 m0, s8, {1024*i}")
            a(f"s_mov_b32 s14, {1024*i}")
        a(f"buffer_load_dwordx4 v5, s[36:39], s14 offen offset:{1024*(i%4)} lds")
    order=[(p,kk,q) for p in range(2) for kk in range(14) for q in range(2)]
    state={'i':0}
    vm=[]
    def w1load(n):
        for _ in range(n):
            i=state['i']
            if i>=56: return
            p,kk,q=order[i]; qq=2*p+q
            if kk%4==0 and kk>0: a(f"v_add_u32 {vr(208+qq)}, 4096, {vr(208+qq)}")
            a(f"global_load_dwordx4 {ar(4*(qq*14+kk),4)}, {vr(208+qq)}, s[32:33] offset:{1024*(kk%4)}")
            vm.append(('w',i))
            state['i']+=1
    w1load(8)
    build_sel(a,2,SL,SH,184,185,186)
    a.stamp(1)
    a("s_waitcnt vmcnt(8)\ns_barrier")
    a.stamp(2)
    for j in range(14):
        a(f"ds_read_b128 {vr(RW+4*j,4)}, v215 offset:{4096*j}")
    a(f"""
    v_add_u32 v198, s6, v3
    v_mul_u32_u24 v198, 896, v198
    v_lshl_add_u32 v198, v4, 4, v198
    v_add_u32 v198, {WS_HR}, v198
    s_mul_i32 s7, s3, {14*1024}
    s_add_u32 s7, s7, {LNB}
    v_add_u32 v199, s7, v7
    v_add_u32 v214, {LNB}, v7
    """)
    for j in range(14):
        a(f"s_waitcnt lgkmcnt({13-j})")
        a(f"v_mfma_f32_16x16x32_bf16 {vr(F+8*j,4)}, {vr(RW+4*j,4)}, {vr(SL,4)}, 0")
        a(f"v_mfma_f32_16x16x32_bf16 {vr(F+8*j+4,4)}, {vr(RW+4*j,4)}, {vr(SH,4)}, 0")
        if j%4==3: w1load(1)
    ACCs=184; AC2=186; TT=188; MEAN=190; MB=192; RS=194; T2=196
    for i in range(56):
        if i==0: a(f"v_pk_add_f32 {vr(ACCs,2)}, {vr(F,2)}, 0")
        else: a(f"v_pk_add_f32 {vr(ACCs,2)}, {vr(ACCs,2)}, {vr(F+2*i,2)}")
        if i%16==15: w1load(1)
    vm.append('h'); vm.append('h')
    for jp in range(7):
        a(f"s_cmp_eq_u32 s5, {jp}")
        a(f"s_cbranch_scc0 K3_SK{jp}")
        for j in (2*jp,2*jp+1):
            o=200+4*(j&1)
            for q in range(4):
                a(f"v_cvt_pk_bf16_f32 {vr(o+q)}, {vr(F+8*j+2*q)}, {vr(F+8*j+2*q+1)}")
            a(f"global_store_dwordx4 v198, {vr(o,4)}, s[32:33] offset:{64*j}")
        a.label(f"K3_SK{jp}")
    a("s_nop 1")
    a(f"v_add_f32 {vr(ACCs)}, {vr(ACCs)}, {vr(ACCs+1)}")
    xreduce(a,ACCs,TT)
    a(f"v_mul_f32 {vr(MEAN)}, 0x3b124925, {vr(ACCs)}")
    a(f"v_mov_b32 {vr(MEAN+1)}, {vr(MEAN)}")
    for i in range(56):
        t=TT if i%2==0 else T2
        a(f"v_pk_add_f32 {vr(t,2)}, {vr(F+2*i,2)}, {vr(MEAN,2)} neg_lo:[0,1] neg_hi:[0,1]")
        if i==0: a(f"v_pk_mul_f32 {vr(AC2,2)}, {vr(t,2)}, {vr(t,2)}")
        else: a(f"v_pk_fma_f32 {vr(AC2,2)}, {vr(t,2)}, {vr(t,2)}, {vr(AC2,2)}")
        if i%9==8: w1load(1)
    a(f"v_add_f32 {vr(AC2)}, {vr(AC2)}, {vr(AC2+1)}")
    xreduce(a,AC2,TT)
    a(f"""
    v_mul_f32 {vr(AC2)}, 0x3b124925, {vr(AC2)}
    v_cvt_pk_bf16_f32 {vr(TT)}, {vr(MEAN)}, {vr(AC2)}
    v_lshlrev_b32 {vr(MB)}, 16, {vr(TT)}
    v_mov_b32 {vr(MB+1)}, {vr(MB)}
    v_and_b32 {vr(TT)}, s15, {vr(TT)}
    v_add_f32 {vr(TT)}, 0x3727c5ac, {vr(TT)}
    v_cvt_pk_bf16_f32 {vr(TT)}, {vr(TT)}, {vr(TT)}
    v_and_b32 {vr(TT)}, s15, {vr(TT)}
    v_sqrt_f32 {vr(TT)}, {vr(TT)}
    v_cvt_pk_bf16_f32 {vr(TT)}, {vr(TT)}, {vr(TT)}
    v_and_b32 {vr(TT)}, s15, {vr(TT)}
    v_rcp_f32 {vr(RS)}, {vr(TT)}
    v_mov_b32 {vr(RS+1)}, {vr(RS)}
    """)
    a.stamp(3)
    for j in range(14):
        o=200+4*(j%2)
        for q in range(4):
            t=TT if q%2==0 else T2
            a(f"v_pk_add_f32 {vr(t,2)}, {vr(F+8*j+2*q,2)}, {vr(MB,2)} neg_lo:[0,1] neg_hi:[0,1]")
            a(f"v_cvt_pk_bf16_f32 {vr(t)}, {vr(t)}, {vr(t+1)}")
            a(f"v_and_b32 {vr(t+1)}, s15, {vr(t)}")
            a(f"v_lshlrev_b32 {vr(t)}, 16, {vr(t)}")
            a(f"v_pk_mul_f32 {vr(t,2)}, {vr(t,2)}, {vr(RS,2)}")
            a(f"v_cvt_pk_bf16_f32 {vr(o+q)}, {vr(t)}, {vr(t+1)}")
        a(f"ds_write_b128 v199, {vr(o,4)} offset:{1024*j}")
        w1load(1)
    a(f"""
    s_lshl_b32 s7, s4, 2
    s_mul_i32 s7, s7, 56
    s_lshl_b32 s8, s5, 3
    s_add_u32 s7, s7, s8
    s_lshl_b32 s8, s3, 1
    s_add_u32 s7, s7, s8
    s_lshl_b32 s7, s7, 10
    s_add_u32 s7, s7, {WS_HF}
    v_add_u32 v6, s7, v7
    s_lshr_b32 s7, s2, 3
    s_mul_i32 s7, s7, 57344
    s_mul_i32 s8, s3, 14336
    s_add_u32 s7, s7, s8
    s_add_u32 s7, s7, {WS_W2F}
    v_add_u32 v212, s7, v7
    """)
    pf={'i':0}
    def prefetch():
        i=pf['i']
        if i>=14: return
        if i%4==0 and i>0: a("v_add_u32 v212, 4096, v212")
        a(f"global_load_dwordx4 {vr(128+4*(i%8),4)}, v212, s[32:33] offset:{1024*(i%4)}")
        vm.append('pf'); pf['i']+=1
    a.stamp(4)
    a("""
    s_waitcnt lgkmcnt(0)
    s_barrier
    """)
    a.stamp(5)
    BF=8; ACC=64
    def loadsB(kk,buf):
        return [f"ds_read_b128 {vr(BF+16*buf+4*tt,4)}, v214 offset:{(tt*14+kk)*1024}" for tt in range(4)]
    for l in loadsB(0,0): a(l)
    step=0
    for p in range(2):
        for kk in range(14):
            nxt=(p*14+kk+1)
            L=loadsB(nxt%14,(step+1)&1) if nxt<28 else []
            idx=p*28+kk*2+1
            while ('w',idx) not in vm: w1load(1)
            later=len(vm)-1-vm.index(('w',idx))
            a(f"s_waitcnt vmcnt({min(later,63)}) lgkmcnt(0)")
            for q in range(2):
                for tt in range(4):
                    acc=ACC+32*p+4*(4*q+tt)
                    c="0" if kk==0 else vr(acc,4)
                    a(f"v_mfma_f32_16x16x32_bf16 {vr(acc,4)}, {ar(4*((2*p+q)*14+kk),4)}, {vr(BF+16*(step&1)+4*tt,4)}, {c}")
                    if L: a(L.pop(0))
                    elif q==1 and tt in (1,3):
                        w1load(1)
            step+=1
        if p==1: a.stamp(6)
        for tt in range(4):
            a(f"v_add_u32 v5, {tt*56*1024}, v6")
            o=40+4*tt
            for dq in range(2):
                acc=ACC+32*p+4*(4*dq+tt)
                for r in range(4): a(f"v_max_f32 {vr(acc+r)}, 0, {vr(acc+r)}")
                a(f"v_cvt_pk_bf16_f32 {vr(o+2*dq)}, {vr(acc)}, {vr(acc+1)}")
                a(f"v_cvt_pk_bf16_f32 {vr(o+2*dq+1)}, {vr(acc+2)}, {vr(acc+3)}")
            a(f"global_store_dwordx4 v5, {vr(o,4)}, s[32:33] offset:{1024*p}")
            vm.append('H')
    a.stamp(7)
    a.wg_end(2,"k3a")
    a.dump_stamps(100,"k3a")
    a("s_endpgm")
    a.label("K3_PF")
    a(f"""
    s_sub_u32 s4, s2, 224
    s_lshr_b32 s4, s4, 3
    s_lshl_b32 s4, s4, 2
    s_add_u32 s4, s4, s3
    s_mul_i32 s4, s4, {98*1024}
    s_add_u32 s4, s4, {WS_W2F}
    v_lshlrev_b32 v7, 4, v2
    v_add_u32 v7, s4, v7
    s_waitcnt lgkmcnt(0)
    """)
    for i in range(98):
        if i%4==0 and i>0: a("v_add_u32 v7, 4096, v7")
        if i>=32: a("s_waitcnt vmcnt(31)")
        a(f"global_load_dwordx4 {vr(8+4*(i%32),4)}, v7, s[32:33] offset:{1024*(i%4)}")
    a.label("K3_END")
    a("s_endpgm")
    return a.text()+kd("k3_kernel",216+224,40,216), "; @launch kernel=k3_kernel grid=(256,1,1) block=(256,1,1) lds=114688"

def gen_k4():
    a=Asm()
    a.raw(head("k4_kernel"))
    a.wg_begin()
    NS=5
    a(f"""
    s_cmp_ge_u32 s2, 224
    s_cbranch_scc1 K4_END
    s_load_dwordx2 s[32:33], s[0:1], 112
    s_load_dwordx2 s[34:35], s[0:1], 96
    v_lshrrev_b32 v1, 6, v0
    v_and_b32 v2, 63, v0
    v_readfirstlane_b32 s3, v1
    s_mov_b32 s15, 0xffff0000
    """)
    tile_ids(a)
    a(f"""
    v_lshlrev_b32 v7, 4, v2
    s_cmp_ge_u32 s3, 4
    s_cbranch_scc1 K4_LD
    v_and_b32 v3, 15, v2
    v_lshrrev_b32 v4, 4, v2
    s_and_b32 s10, s3, 1
    s_lshr_b32 s11, s3, 1
    s_lshl_b32 s6, s4, 6
    s_lshl_b32 s7, s11, 5
    s_add_u32 s6, s6, s7
    v_add_u32 v8, s6, v3
    v_mul_u32_u24 v8, 896, v8
    v_lshl_add_u32 v8, v4, 4, v8
    s_lshl_b32 s6, s5, 7
    s_lshl_b32 s7, s10, 6
    s_add_u32 s6, s6, s7
    v_add_u32 v8, s6, v8
    v_add_u32 v9, {16*896}, v8
    v_add_u32 v10, {WS_HR}, v8
    v_add_u32 v11, {WS_HR}, v9
    s_lshl_b32 s6, s10, 13
    v_add_u32 v12, s6, v7
    s_lshl_b32 s6, s11, 13
    s_add_u32 s6, s6, 16384
    v_add_u32 v13, s6, v7
    v_add_u32 v14, 65536, v12
    v_add_u32 v15, 65536, v13
    v_add_u32 v56, 131072, v12
    v_add_u32 v57, 131072, v13
    s_waitcnt lgkmcnt(0)
    global_load_dwordx4 v[16:19], v10, s[32:33]
    global_load_dwordx4 v[20:23], v11, s[32:33]
    """)
    a.stamp(0)
    FR=24; ACC=64
    for st in range(14):
        a("s_barrier")
        if st in (0,1,7,13): a.stamp({0:1,1:2,7:3,13:4}[st])
        sl=st%NS
        def rd(ks):
            b=FR+16*(ks&1)
            ra,rb=(("v12","v13"),("v14","v15"),("v56","v57"))[sl//2]
            so=(sl%2)*32768
            return [f"ds_read_b128 {vr(b,4)}, {ra} offset:{so+ks*1024}",
                    f"ds_read_b128 {vr(b+8,4)}, {rb} offset:{so+ks*1024}",
                    f"ds_read_b128 {vr(b+4,4)}, {ra} offset:{so+4096+ks*1024}",
                    f"ds_read_b128 {vr(b+12,4)}, {rb} offset:{so+4096+ks*1024}"]
        for l in rd(0): a(l)
        for ks in range(4):
            L=rd(ks+1) if ks<3 else []
            a(f"s_waitcnt lgkmcnt(0)")
            b=FR+16*(ks&1)
            for dq in range(2):
                for tq in range(2):
                    acc=ACC+4*(2*dq+tq)
                    c="0" if (st==0 and ks==0) else vr(acc,4)
                    if L: a(L.pop(0))
                    a(f"v_mfma_f32_16x16x32_bf16 {vr(acc,4)}, {vr(b+4*dq,4)}, {vr(b+8+4*tq,4)}, {c}")
    a.stamp(5)
    a("s_waitcnt vmcnt(0)")
    for tq in range(2):
        H=16+4*tq; o=24+4*tq
        for dq in range(2):
            acc=ACC+4*(2*dq+tq)
            for pr in range(2):
                a(f"v_cvt_pk_bf16_f32 v40, {vr(acc+2*pr)}, {vr(acc+2*pr+1)}")
                rnd_unpack(a,41,40,40)
                rnd_unpack(a,42,43,H+2*dq+pr)
                a(f"v_add_f32 v41, v41, v42")
                a(f"v_add_f32 v40, v40, v43")
                a(f"v_cvt_pk_bf16_f32 {vr(o+2*dq+pr)}, v41, v40")
        a(f"global_store_dwordx4 {vr(8+tq)}, {vr(o,4)}, s[34:35]")
    a.stamp(6)
    a.wg_end(3,"k4a")
    a.dump_stamps(100,"k4a")
    a("s_endpgm")
    a.label("K4_LD")
    a(f"""
    s_sub_u32 s3, s3, 4
    s_lshl_b32 s6, s5, 2
    s_add_u32 s6, s6, s3
    s_mul_i32 s6, s6, {56*1024}
    s_add_u32 s6, s6, {WS_W2F}
    v_add_u32 v5, s6, v7
    s_lshl_b32 s6, s4, 2
    s_add_u32 s6, s6, s3
    s_mul_i32 s6, s6, {56*1024}
    s_add_u32 s6, s6, {WS_HF}
    v_add_u32 v6, s6, v7
    s_lshl_b32 s12, s3, 12
    s_add_u32 s13, s12, 16384
    s_waitcnt lgkmcnt(0)
    s_mov_b32 s36, s32
    s_mov_b32 s37, s33
    s_mov_b32 s38, {WS_W2F+0x188000}
    s_mov_b32 s39, 0x00020000
    """)
    def issue(st):
        sl=st%NS
        a(f"s_mov_b32 s14, {st*4096}")
        a(f"s_add_u32 m0, s12, {sl*32768}")
        for k in range(4): a(f"buffer_load_dwordx4 v5, s[36:39], s14 offen offset:{1024*k} lds")
        a(f"s_add_u32 m0, s13, {sl*32768}")
        for k in range(4): a(f"buffer_load_dwordx4 v6, s[36:39], s14 offen offset:{1024*k} lds")
    issued=0
    def upto(n):
        nonlocal issued
        while issued<min(n,14):
            issue(issued); issued+=1
    upto(2)
    for st in range(14):
        a(f"s_waitcnt vmcnt({8*(issued-1-st)})")
        a("s_barrier")
        upto(min(st+NS, issued+2))
    a.label("K4_END")
    a("s_endpgm")
    return a.text()+kd("k4_kernel",96,48,96), "; @launch kernel=k4_kernel grid=(224,1,1) block=(512,1,1) lds=163840"

def build(kernels, path):
    hdr=open("cdna_kernels/"+NAME+".s.ref").read().split("; Override launch")[0]
    txt=""; launches=""
    for k in kernels:
        t,l=k(); txt+=t; launches+=l+"\n"
    s=hdr+launches+'.amdgcn_target "amdgcn-amd-amdhsa--gfx950"\n.text\n'+txt
    open(path,"w").write(s)

if __name__=="__main__":
    import os
    Asm.STMOD=os.environ.get("STMOD","")
    build([gen_k1,gen_k3,gen_k4], "k_v8.s")
    Asm.STAMPS=True
    build([gen_k1,gen_k3,gen_k4], "kst_v8.s")
```

```python
import sys, os
from asmlib import *

NAME="sequential_preLN__ssm_conv_s4__dense_activation_relu__prompt"
TP=4352
WS_XT=0x000000; WS_ST=0x200000; WS_KR=0x240000; WS_HT=0x400000; WS_HR=0x600000; WS_HF=0x800000
WS_W1F=0x1000000; WS_W2F=0x1200000; WCP=0; WS_SY=0x1400000

def kd(name,vgpr,sgpr,accum):
    if Asm.STAMPS: sgpr=102
    return f""".section .rodata,"a"
.p2align 6
.amdhsa_kernel {name}
  .amdhsa_next_free_vgpr {vgpr}
  .amdhsa_next_free_sgpr {sgpr}
  .amdhsa_accum_offset {accum}
  .amdhsa_group_segment_fixed_size 0
  .amdhsa_kernarg_size 120
  .amdhsa_user_sgpr_count 2
  .amdhsa_user_sgpr_kernarg_segment_ptr 1
  .amdhsa_system_sgpr_workgroup_id_x 1
.end_amdhsa_kernel
.text
"""
def head(name):
    return f""".globl {name}
.p2align 8
.type {name},@function
{name}:
"""
def cmul(a,dst,X,Y,T):
    a(f"v_pk_mul_f32 {vr(T,2)}, {vr(X,2)}, {vr(Y,2)} op_sel:[0,0] op_sel_hi:[0,1]")
    a(f"v_pk_fma_f32 {vr(dst,2)}, {vr(X,2)}, {vr(Y,2)}, {vr(T,2)} op_sel:[1,1,0] op_sel_hi:[1,0,1] neg_lo:[1,0,0]")

def build_sel(a,lane,SL,SH,t0,t1,t2):
    a(f"v_and_b32 {vr(t0)}, 15, {vr(lane)}")
    a(f"v_lshrrev_b32 {vr(t1)}, 4, {vr(lane)}")
    a(f"v_lshrrev_b32 {vr(t2)}, 3, {vr(t0)}")
    a(f"v_sub_u32 {vr(t1)}, {vr(t1)}, {vr(t2)}")
    a(f"v_and_b32 {vr(t2)}, 1, {vr(t0)}")
    a(f"v_lshlrev_b32 {vr(t2)}, 4, {vr(t2)}")
    a(f"v_mov_b32 {vr(SL)}, 0x3f80")
    a(f"v_lshlrev_b32 {vr(t2)}, {vr(t2)}, {vr(SL)}")
    a(f"v_bfe_u32 {vr(t0)}, {vr(t0)}, 1, 2")
    a(f"v_lshlrev_b32 {vr(t1)}, 2, {vr(t1)}")
    a(f"v_add_u32 {vr(t0)}, {vr(t0)}, {vr(t1)}")
    for r in range(4):
        a(f"v_cmp_eq_u32 vcc, {r}, {vr(t0)}")
        a(f"v_cndmask_b32 {vr(SL+r)}, 0, {vr(t2)}, vcc")
    for r in range(4):
        a(f"v_cmp_eq_u32 vcc, {8+r}, {vr(t0)}")
        a(f"v_cndmask_b32 {vr(SH+r)}, 0, {vr(t2)}, vcc")

def xreduce(a,v,t):
    a(f"v_mov_b32 {vr(t)}, {vr(v)}")
    a(f"v_permlane16_swap_b32 {vr(v)}, {vr(t)}")
    a(f"v_add_f32 {vr(v)}, {vr(v)}, {vr(t)}")
    a(f"v_mov_b32 {vr(t)}, {vr(v)}")
    a(f"v_permlane32_swap_b32 {vr(v)}, {vr(t)}")
    a(f"v_add_f32 {vr(v)}, {vr(v)}, {vr(t)}")

def rnd_unpack(a,dlo,dhi,src):
    a(f"v_lshlrev_b32 {vr(dlo)}, 16, {vr(src)}")
    a(f"v_and_b32 {vr(dhi)}, s15, {vr(src)}")

def xpose8(a,b,O):
    for q in range(4):
        for p in range(4):
            a(f"v_perm_b32 {vr(O+4*(2*q)+p)}, {vr(b+4*(2*p+1)+q)}, {vr(b+4*(2*p)+q)}, s12")
            a(f"v_perm_b32 {vr(O+4*(2*q+1)+p)}, {vr(b+4*(2*p+1)+q)}, {vr(b+4*(2*p)+q)}, s13")

def tile_ids(a):
    a("""
    s_and_b32 s4, s2, 7
    s_lshr_b32 s6, s2, 3
    s_mul_i32 s7, s6, 37
    s_lshr_b32 s7, s7, 8
    s_mul_i32 s8, s7, 7
    s_sub_u32 s5, s6, s8
    s_lshl_b32 s4, s4, 2
    s_add_u32 s4, s4, s7
    """)

def gen_k1():
    a=Asm()
    a.raw(head("k1_kernel"))
    a.wg_begin()
    a("""
    s_cmp_ge_u32 s2, 256
    s_cbranch_scc1 K1_END
    s_load_dwordx16 s[16:31], s[0:1], 0
    s_load_dwordx2 s[32:33], s[0:1], 112
    s_load_dwordx4 s[36:39], s[0:1], 80
    s_load_dwordx2 s[34:35], s[0:1], 104
    s_load_dwordx2 s[60:61], s[0:1], 64
    v_lshrrev_b32 v1, 6, v0
    v_and_b32 v2, 63, v0
    v_readfirstlane_b32 s3, v1
    s_cmp_lt_u32 s2, 32
    s_cbranch_scc1 K1_LN
    s_sub_u32 s58, s2, 32
    """)
    PITCH=544; REG=12544
    KB=[8*REG, 8*REG+7552]; UB=[0,8704]; CP=4288; YB0=17408
    a(f"""
    s_lshr_b32 s4, s3, 2               ; c
    s_bfe_u32 s5, s3, 0x10001          ; half
    s_and_b32 s56, s3, 1               ; role
    s_lshl_b32 s6, s58, 1
    s_add_u32 s6, s6, s4
    s_lshl_b32 s7, s6, 9
    s_lshl_b32 s8, s5, 8
    s_add_u32 s7, s7, s8
    v_lshlrev_b32 v3, 2, v2
    v_add_u32 v3, s7, v3
    s_lshl_b32 s10, s58, 2
    v_mov_b32 v40, 0
    v_mov_b32 v41, 0
    v_mov_b32 v42, 0
    v_mov_b32 v43, 0
    v_lshlrev_b32 v44, 4, v0
    v_add_u32 v44, {KB[0]}, v44
    v_cmp_gt_u32 vcc, 150, v0
    s_and_saveexec_b64 s[12:13], vcc
    ds_write_b128 v44, v[40:43]
    ds_write_b128 v44, v[40:43] offset:7552
    s_mov_b64 exec, s[12:13]
    s_waitcnt lgkmcnt(0)
    """)
    a.stamp(0)
    a(f"""
    s_and_b32 s40, s2, 7
    s_lshr_b32 s41, s58, 3             ; j
    s_mul_i32 s42, s41, 37
    s_lshr_b32 s42, s42, 8             ; k = j/7
    s_mul_i32 s43, s42, 7
    s_sub_u32 s43, s41, s43
    s_lshl_b32 s42, s42, 3
    s_add_u32 s40, s40, s42
    s_mul_i32 s40, s40, 57344
    s_lshl_b32 s43, s43, 13
    s_add_u32 s40, s40, s43
    v_lshlrev_b32 v236, 4, v0
    v_add_u32 v236, s40, v236
    global_load_dwordx4 v[248:251], v236, s[16:17]
    global_load_dword v10, v3, s[18:19]
    global_load_dword v11, v3, s[20:21]
    global_load_dword v12, v3, s[22:23]
    global_load_dword v13, v3, s[24:25]
    global_load_dword v14, v3, s[26:27]
    global_load_dword v15, v3, s[28:29]
    s_load_dword s9, s[30:31], s10
    s_load_dword s59, s[60:61], s10
    s_lshl_b32 s40, s58, 3
    s_add_u32 s40, s40, s3
    s_min_u32 s40, s40, 1567
    s_cmp_ge_u32 s40, 784
    s_cselect_b32 s41, 784, 0
    s_sub_u32 s42, s40, s41            ; U'
    s_mul_i32 s43, s42, 4682
    s_lshr_b32 s43, s43, 16            ; a = U'/14
    s_mul_i32 s44, s43, 14
    s_sub_u32 s44, s42, s44            ; b = U'%14
    s_mov_b32 s45, 3584
    s_mov_b32 s46, 64
    s_mov_b32 s47, {32*3584}
    s_mov_b32 s48, {28*1024}
    s_mov_b32 s49, 1024
    s_mov_b32 s50, {14*1024}
    s_mov_b32 s51, {WS_W1F}
    s_mov_b32 s52, s36
    s_mov_b32 s53, s37
    s_cmp_lt_u32 s40, 784
    s_cbranch_scc1 K1_WSEL
    s_mov_b32 s45, 896
    s_mov_b32 s46, {32*896}
    s_mov_b32 s47, 64
    s_mov_b32 s48, 1024
    s_mov_b32 s49, {112*1024}
    s_mov_b32 s50, {56*1024}
    s_mov_b32 s51, {WS_W2F}
    s_mov_b32 s52, s38
    s_mov_b32 s53, s39
K1_WSEL:
    s_mul_i32 s54, s43, s46
    s_mul_i32 s55, s44, s47
    s_add_u32 s54, s54, s55
    s_mul_i32 s55, s43, s48
    s_mul_i32 s41, s44, s49
    s_add_u32 s55, s55, s41
    s_add_u32 s55, s55, s51
    v_and_b32 v5, 15, v2
    v_lshrrev_b32 v6, 4, v2
    v_lshrrev_b32 v237, 2, v5
    v_lshlrev_b32 v237, 3, v237
    v_and_b32 v236, 3, v5
    v_add_u32 v236, v236, v237
    v_mul_lo_u32 v236, v236, s45
    v_lshl_add_u32 v236, v6, 4, v236
    v_add_u32 v236, s54, v236
    s_lshl_b32 s41, s45, 2
    v_add_u32 v237, s41, v236
    s_mul_i32 s11, s3, {REG}
    s_and_b32 s57, s3, 6
    s_mul_i32 s57, s57, {REG}          ; G region
    v_lshlrev_b32 v4, 3, v2
    v_add_u32 v4, s11, v4
    v_mul_u32_u24 v7, {PITCH}, v5
    v_lshl_add_u32 v7, v6, 4, v7
    v_add_u32 v9, s57, v7
    v_add_u32 v7, s11, v7
    s_waitcnt lgkmcnt(0)
    s_lshl_b32 s12, s9, 16
    s_and_b32 s13, s9, 0xffff0000
    s_cmp_eq_u32 s4, 0
    s_cselect_b32 s9, s12, s13
    s_mov_b32 s12, 0x3fb8aa3b
    s_mov_b32 s13, 0x32a57060
    s_mov_b32 s14, 0x3f317218
    s_mov_b32 s15, 0xffff0000
    v_mov_b32 v16, s9
    v_mul_f32 v17, s12, v16
    v_fma_f32 v18, v16, s12, -v17
    v_fma_f32 v18, v16, s13, v18
    v_exp_f32 v17, v17
    v_mul_f32 v18, s14, v18
    v_fma_f32 v17, v17, v18, v17
    v_cvt_pk_bf16_f32 v17, v17, v17
    v_and_b32 v16, s15, v17
    s_waitcnt vmcnt(0)
    global_load_dwordx4 v[240:243], v236, s[52:53]
    global_load_dwordx4 v[244:247], v237, s[52:53]
    v_mul_u32_u24 v236, 3584, v0
    s_lshl_b32 s41, s58, 2
    v_add_u32 v236, s41, v236
    v_mov_b32 v252, v236
    """)
    a.stamp(1)
    P=[20,22]; CB=[24,26]; Z1=[28,30]; Z8=[32,34]; Z128=[36,38]
    E={k:[40+4*(k-2),42+4*(k-2)] for k in range(2,8)}
    E[1]=Z1
    CUR=[64,66]; V=[68,70]; T=[72,74]; U=[76,78]; HH=80; LL=82
    TM=84; GF=96; AF=160; D=224
    def zexp(j,l,Z):
        if l==1:
            a(f"v_exp_f32 {vr(TM+6)}, {vr(P[j])}")
            a(f"v_fract_f32 {vr(TM+7)}, {vr(P[j]+1)}")
        else:
            lit = {2:"2.0",8:"0x41000000",128:"0x43000000"}[l]
            a(f"v_mul_f32 {vr(TM+6)}, {lit}, {vr(P[j])}")
            a(f"v_mul_f32 {vr(TM+7)}, {lit}, {vr(P[j]+1)}")
            a(f"v_exp_f32 {vr(TM+6)}, {vr(TM+6)}")
            a(f"v_fract_f32 {vr(TM+7)}, {vr(TM+7)}")
        a(f"v_cos_f32 {vr(TM+8)}, {vr(TM+7)}")
        a(f"v_sin_f32 {vr(TM+9)}, {vr(TM+7)}")
        a(f"v_mul_f32 {vr(Z[j])}, {vr(TM+6)}, {vr(TM+8)}")
        a(f"v_mul_f32 {vr(Z[j]+1)}, {vr(TM+6)}, {vr(TM+9)}")
    for j in range(2):
        def unp(dst,src):
            if j==0: a(f"v_lshlrev_b32 {vr(dst)}, 16, {vr(src)}")
            else: a(f"v_and_b32 {vr(dst)}, s15, {vr(src)}")
        unp(TM,10); unp(TM+1,11); unp(TM+2,12); unp(TM+3,13); unp(TM+4,14); unp(TM+5,15)
        a(f"v_mul_f32 {vr(TM)}, v16, {vr(TM)}")
        a(f"v_mul_f32 {vr(TM+1)}, v16, {vr(TM+1)}")
        a(f"v_mul_f32 {vr(TM+2)}, v16, {vr(TM+2)}")
        a(f"v_mul_f32 {vr(TM+3)}, v16, {vr(TM+3)}")
        a(f"v_mul_f32 {vr(P[j])}, s12, {vr(TM)}")
        a(f"v_mul_f32 {vr(P[j]+1)}, 0.15915494, {vr(TM+1)}")
        cmul(a,CB[j],TM+4,TM+2,T[j])
        zexp(j,128,Z128)
    a(f"""
    v_max3_f32 {vr(TM)}, |{vr(CB[0])}|, |{vr(CB[0]+1)}|, |{vr(CB[1])}|
    v_max_f32 {vr(TM)}, {vr(TM)}, |{vr(CB[1]+1)}|
    v_max_u32_dpp {vr(TM)}, {vr(TM)}, {vr(TM)} quad_perm:[1,0,3,2] row_mask:0xf bank_mask:0xf
    v_max_u32_dpp {vr(TM)}, {vr(TM)}, {vr(TM)} quad_perm:[2,3,0,1] row_mask:0xf bank_mask:0xf
    v_max_u32_dpp {vr(TM)}, {vr(TM)}, {vr(TM)} row_ror:4 row_mask:0xf bank_mask:0xf
    v_max_u32_dpp {vr(TM)}, {vr(TM)}, {vr(TM)} row_ror:8 row_mask:0xf bank_mask:0xf
    v_mov_b32 {vr(TM+1)}, {vr(TM)}
    v_permlane16_swap_b32 {vr(TM)}, {vr(TM+1)}
    v_max_u32 {vr(TM)}, {vr(TM)}, {vr(TM+1)}
    v_mov_b32 {vr(TM+1)}, {vr(TM)}
    v_permlane32_swap_b32 {vr(TM)}, {vr(TM+1)}
    v_max_u32 {vr(TM)}, {vr(TM)}, {vr(TM+1)}
    v_lshrrev_b32 {vr(TM)}, 23, {vr(TM)}
    v_max_u32 {vr(TM)}, 1, {vr(TM)}
    v_min_u32 {vr(TM)}, 253, {vr(TM)}
    v_lshlrev_b32 v19, 23, {vr(TM)}
    v_sub_u32 {vr(TM)}, 254, {vr(TM)}
    v_lshlrev_b32 {vr(TM)}, 23, {vr(TM)}         ; scale 2^(127-e)
    v_mul_f32 {vr(CB[0])}, {vr(TM)}, {vr(CB[0])}
    v_mul_f32 {vr(CB[0]+1)}, {vr(TM)}, {vr(CB[0]+1)}
    v_mul_f32 {vr(CB[1])}, {vr(TM)}, {vr(CB[1])}
    v_mul_f32 {vr(CB[1]+1)}, {vr(TM)}, {vr(CB[1]+1)}
    """)
    def emit_row(Vr,row,neg):
        ng="-" if neg else ""
        emit_row.n+=1
        if emit_row.n in (3,8,13,18) :
            g=(3,8,13,18).index(emit_row.n)
            a(f"global_load_dword {vr(248+g)}, v252, s[16:17] offset:{896*g}")
        hh=HH+2*(emit_row.n&1)
        for j in range(2):
            a(f"v_cvt_pk_f16_f32 {vr(hh+j)}, {vr(Vr[j])}, {ng}{vr(Vr[j]+1)}")
        a(f"ds_write_b64 v4, {vr(hh,2)} offset:{row*PITCH}")
    def read_G():
        for ks in range(8):
            a(f"ds_read_b128 {vr(GF+4*ks,4)}, v9 offset:{64*ks}")
    def read_A():
        for ks in range(8):
            a(f"ds_read_b128 {vr(AF+4*ks,4)}, v7 offset:{64*ks}")
    def mfma_tile(rt):
        for ks in range(8):
            a(f"s_waitcnt lgkmcnt({7-ks})")
            c = "0" if ks==0 else vr(D+4*rt,4)
            a(f"v_mfma_f32_16x16x32_f16 {vr(D+4*rt,4)}, {vr(AF+4*ks,4)}, {vr(GF+4*ks,4)}, {c}")
        for r in range(4):
            a(f"v_mul_f32 {vr(D+4*rt+r)}, v19, {vr(D+4*rt+r)}")
    def side_job():
        S0=AF; S1=AF+4; O=AF+8
        a(f"""
        s_cmp_ge_u32 s58, 196
        s_cbranch_scc1 K1_WDONE{side_job.n}
        v_lshrrev_b32 v236, 2, v5
        v_and_b32 v237, 1, v5
        v_lshlrev_b32 v237, 4, v237
        v_mov_b32 v238, 0x3f80
        v_lshlrev_b32 v237, v237, v238
        v_cmp_eq_u32 vcc, v236, v6
        v_cndmask_b32 v237, 0, v237, vcc
        v_bfe_u32 v238, v5, 1, 1
        v_cmp_eq_u32 vcc, 0, v238
        v_cndmask_b32 {vr(S0)}, 0, v237, vcc
        v_cndmask_b32 {vr(S0+1)}, v237, 0, vcc
        v_mov_b32 {vr(S0+2)}, 0
        v_mov_b32 {vr(S0+3)}, 0
        v_mov_b32 {vr(S1)}, 0
        v_mov_b32 {vr(S1+1)}, 0
        v_mov_b32 {vr(S1+2)}, {vr(S0)}
        v_mov_b32 {vr(S1+3)}, {vr(S0+1)}
        v_lshlrev_b32 v236, 4, v2
        v_add_u32 v236, s55, v236
        v_add_u32 v237, s50, v236
        s_waitcnt vmcnt(0)
        """)
        for par,S in enumerate((S0,S1)):
            a(f"v_mfma_f32_16x16x32_bf16 {vr(O+8*par,4)}, v[240:243], {vr(S,4)}, 0")
            a(f"v_mfma_f32_16x16x32_bf16 {vr(O+8*par+4,4)}, v[244:247], {vr(S,4)}, 0")
        for par in range(2):
            for q in range(4):
                a(f"v_cvt_pk_bf16_f32 {vr(O+16+4*par+q)}, {vr(O+8*par+2*q)}, {vr(O+8*par+2*q+1)}")
            a(f"global_store_dwordx4 {vr(236+par)}, {vr(O+16+4*par,4)}, s[32:33]")
        a.label(f"K1_WDONE{side_job.n}")
        a("s_nop 1")
        side_job.n+=1
    side_job.n=0
    H=CUR
    a("""
    s_cmp_eq_u32 s56, 1
    s_cbranch_scc1 K1_RB
    """)
    emit_row.n=0
    for j in range(2): zexp(j,8,Z8)
    for j in range(2):
        a(f"v_mov_b32 {vr(CUR[j])}, 1.0")
        a(f"v_mov_b32 {vr(CUR[j]+1)}, 0")
    emit_row(CUR,0,False)
    emit_row(Z8,1,False)
    for g in range(2,16):
        for j in range(2):
            cmul(a,CUR[j], Z8[j] if g==2 else CUR[j], Z8[j], T[j])
        emit_row(CUR,g,False)
    for j in range(2): zexp(j,1,Z1)
    for k in range(2,8):
        for j in range(2):
            cmul(a,E[k][j],E[k-1][j],Z1[j],T[j])
    a.stamp(2)
    a("s_waitcnt lgkmcnt(0)\ns_barrier")
    read_G()
    a("s_waitcnt lgkmcnt(0)\ns_barrier")
    a.stamp(3)
    for i in range(2):
        src = CB if i==0 else H
        if i==1:
            for j in range(2): cmul(a,H[j],CB[j],Z128[j],T[j])
        emit_row(src,8*i,True)
        for k in range(1,8):
            for j in range(2): cmul(a,V[j],src[j],E[k][j],T[j])
            emit_row(V,8*i+k,True)
    a.stamp(4)
    read_A()
    mfma_tile(0)
    a(f"""
    v_lshlrev_b32 v8, 5, v5
    v_add_u32 v8, s11, v8
    v_lshrrev_b32 v9, 1, v6
    v_lshlrev_b32 v9, 9, v9
    v_and_b32 v10, 1, v6
    v_lshlrev_b32 v10, 4, v10
    v_add3_u32 v9, v8, v9, v10
    """)
    for r in range(4): a(f"ds_write_b32 v9, {vr(D+r)} offset:{4*r}")
    side_job()
    a("s_branch K1_EXP")
    a.label("K1_RB")
    emit_row.n=0
    for j in range(2): zexp(j,2,E[2])
    for j in range(2): cmul(a,E[4][j],E[2][j],E[2][j],T[j])
    for j in range(2): cmul(a,E[6][j],E[4][j],E[2][j],T[j])
    for j in range(2): cmul(a,H[j],CB[j],Z128[j],T[j])
    for i in range(2,8):
        for j in range(2): cmul(a,H[j],H[j],Z128[j],T[j])
        if i<4:
            g=i-2
            emit_row(H,4*g,True)
            for r in range(1,4):
                for j in range(2): cmul(a,V[j],H[j],E[2*r][j],T[j])
                emit_row(V,4*g+r,True)
        else:
            r=i-4
            emit_row(H,8+r,True)
            for j in range(2): cmul(a,V[j],H[j],E[4][j],T[j])
            emit_row(V,12+r,True)
    a.stamp(2)
    a("s_waitcnt lgkmcnt(0)\ns_barrier")
    read_G()
    a("s_waitcnt lgkmcnt(0)\ns_barrier")
    a.stamp(3)
    read_A()
    mfma_tile(1)
    a.stamp(4)
    for i in range(8,17):
        for j in range(2): cmul(a,H[j],H[j],Z128[j],T[j])
        emit_row(H,i-8,True)
    read_A()
    mfma_tile(2)
    a(f"""
    v_lshlrev_b32 v8, 5, v5
    v_add_u32 v8, s11, v8
    v_lshlrev_b32 v10, 9, v6
    v_add_u32 v10, 1024, v10
    v_lshlrev_b32 v11, 4, v6
    v_add_u32 v11, {2048-32}, v11
    v_mov_b32 v12, 8
    v_mov_b32 v13, 512
    v_cmp_gt_u32 vcc, 2, v6
    v_cndmask_b32 v10, v11, v10, vcc
    v_cndmask_b32 v12, v13, v12, vcc
    v_add_u32 v10, v8, v10
    v_add_u32 v11, v10, v12
    v_add_u32 v13, v11, v12
    v_add_u32 v14, v13, v12
    v_lshlrev_b32 v15, 11, v6
    v_add_u32 v15, 4096, v15
    v_add_u32 v15, v8, v15
    """)
    for r,ad in enumerate((10,11,13,14)): a(f"ds_write_b32 {vr(ad)}, {vr(D+4+r)}")
    for r in range(4): a(f"ds_write_b32 v15, {vr(D+8+r)} offset:{512*r}")
    a.label("K1_EXP")
    a.stamp(5)
    a(f"""
    v_lshrrev_b32 v8, 8, v0
    v_and_b32 v9, 255, v0
    v_mul_u32_u24 v10, {4*REG}, v8
    v_add_u32 v14, {REG}, v10
    v_lshlrev_b32 v11, 1, v9
    v_xor_b32 v11, 63, v11
    v_cmp_gt_u32 vcc, 128, v9
    v_cndmask_b32 v15, v14, v10, vcc
    """)
    LA=20
    for i in range(4):
        a(f"v_add_u32 v12, {512*i}, v11")
        a(f"v_add_u32 v13, {512*i-1}, v11")
        a(f"v_cvt_f32_u32 v12, v12")
        a(f"v_cvt_f32_u32 v13, v13")
        a(f"v_cvt_pk_bf16_f32 v12, v12, v13")
        a(f"v_lshlrev_b32 v13, 16, v12")
        a(f"v_and_b32 v12, s15, v12")
        a(f"v_cvt_u32_f32 v13, v13")
        a(f"v_cvt_u32_f32 v12, v12")
        b="v15" if i==0 else "v14"
        a(f"v_lshl_add_u32 {vr(LA+2*i)}, v13, 2, {b}")
        a(f"v_lshl_add_u32 {vr(LA+2*i+1)}, v12, 2, {b}")
    a(f"""
    v_lshrrev_b32 v12, 5, v9
    v_mul_u32_u24 v12, 160, v12
    v_and_b32 v13, 31, v9
    v_lshl_add_u32 v12, v13, 2, v12
    v_mul_u32_u24 v13, 7552, v8
    v_add_u32 v12, v12, v13
    v_add_u32 v12, {KB[0]+15*160}, v12
    s_waitcnt lgkmcnt(0)
    s_barrier
    """)
    a.stamp(6)
    R0=40;R1=56
    for i in range(8):
        a(f"ds_read_b32 {vr(R0+i)}, {vr(LA+i)}")
        a(f"ds_read_b32 {vr(R1+i)}, {vr(LA+i)} offset:{2*REG}")
        if i==6: a("s_waitcnt lgkmcnt(0)")
    a("s_waitcnt lgkmcnt(0)")
    for i in range(4):
        a(f"v_add_f32 {vr(R0+2*i)}, {vr(R0+2*i)}, {vr(R1+2*i)}")
        a(f"v_add_f32 {vr(R0+2*i+1)}, {vr(R0+2*i+1)}, {vr(R1+2*i+1)}")
        a(f"v_cvt_pk_bf16_f32 {vr(72+i)}, {vr(R0+2*i)}, {vr(R0+2*i+1)}")
        a(f"ds_write_b32 v12, {vr(72+i)} offset:{8*160*i}")
    a("s_cmp_eq_u32 s56, 0\ns_cbranch_scc1 K1_NOSJ")
    side_job()
    a.label("K1_NOSJ")
    a.stamp(7)
    a(f"""
    v_lshlrev_b32 v5, 5, v0
    v_add_u32 v5, {WS_ST}, v5
    s_cmp_lg_u32 s3, 0
    s_cbranch_scc1 K1_POLLED
    v_mov_b32 v10, 0
    s_mov_b32 s6, 0
K1_POLL:
    global_load_dword v11, v10, s[34:35] offset:128 sc1
    s_waitcnt vmcnt(0)
    v_readfirstlane_b32 s7, v11
    s_cmp_eq_u32 s7, 1
    s_cbranch_scc1 K1_POLLED
    s_sleep 2
    s_add_u32 s6, s6, 1
    s_cmp_lt_u32 s6, 0x100000
    s_cbranch_scc1 K1_POLL
K1_POLLED:
    s_waitcnt lgkmcnt(0)
    s_barrier
    """)
    a.stamp(8)
    a(f"""
    global_load_dwordx4 v[24:27], v5, s[32:33] sc1
    global_load_dwordx4 v[28:31], v5, s[32:33] offset:16 sc1
    v_mov_b32 v40, 0
    v_mov_b32 v41, 0
    v_mov_b32 v42, 0
    v_mov_b32 v43, 0
    v_lshlrev_b32 v6, 3, v0
    v_lshlrev_b32 v7, 4, v0
    v_cmp_gt_u32 vcc, 8, v0
    s_and_saveexec_b64 s[12:13], vcc
    ds_write_b128 v7, v[40:43]
    ds_write_b128 v7, v[40:43] offset:{CP}
    ds_write_b128 v7, v[40:43] offset:{UB[1]}
    ds_write_b128 v7, v[40:43] offset:{UB[1]+CP}
    s_mov_b64 exec, s[12:13]
    s_mul_i32 s6, s4, {UB[1]}
    s_and_b32 s5, s3, 3
    v_and_b32 v16, 15, v2
    v_lshrrev_b32 v17, 4, v2
    v_lshl_add_u32 v18, v17, 3, v16
    v_add_u32 v18, 1, v18
    v_and_b32 v19, 1, v18
    v_mul_u32_u24 v19, {CP}, v19
    v_lshrrev_b32 v18, 1, v18
    v_lshl_add_u32 v18, v18, 2, v19
    v_add_u32 v56, s6, v18
    v_add_u32 v57, 1024, v56
    v_add_u32 v58, 2048, v56
    v_add_u32 v59, 3072, v56
    v_add_u32 v60, 4096, v56
    v_mul_u32_u24 v61, 160, v16
    v_lshl_add_u32 v61, v17, 4, v61
    s_mul_i32 s6, s4, 7552
    s_add_u32 s6, s6, {KB[0]}
    v_add_u32 v61, s6, v61
    v_mul_u32_u24 v62, 272, v16
    v_lshl_add_u32 v62, v17, 4, v62
    s_mul_i32 s6, s3, 8704
    s_add_u32 s6, s6, {YB0}
    v_add_u32 v62, s6, v62
    s_lshl_b32 s12, s59, 16
    s_and_b32 s13, s59, s15
    s_waitcnt vmcnt(0)
    """)
    a.stamp(9)
    for c in range(2):
        for p in range(2):
            for k in range(2):
                r=2*p+k
                if c==0: a(f"v_lshlrev_b32 {vr(40+k)}, 16, {vr(248+r)}")
                else: a(f"v_and_b32 {vr(40+k)}, s15, {vr(248+r)}")
                a(f"v_sub_f32 {vr(40+k)}, {vr(40+k)}, {vr(24+2*r)}")
            a(f"v_cvt_pk_bf16_f32 v40, v40, v41")
            rnd_unpack(a,41,42,40)
            a(f"v_mul_f32 v41, v41, {vr(25+4*p)}")
            a(f"v_mul_f32 v42, v42, {vr(27+4*p)}")
            a(f"v_cvt_pk_bf16_f32 {vr(44+2*c+p)}, v41, v42")
        u=44+2*c
        a(f"ds_write_b64 v6, {vr(u,2)} offset:{UB[c]+128}")
        a(f"v_alignbit_b32 v52, {vr(u+1)}, {vr(u)}, 16")
        a(f"ds_write_b32 v6, v52 offset:{UB[c]+CP+128}")
        a(f"ds_write_b16_d16_hi v6, {vr(u+1)} offset:{UB[c]+CP+128+4}")
        a(f"ds_write_b16 v6, {vr(u)} offset:{UB[c]+CP+128-2}")
    a("""
    s_waitcnt lgkmcnt(0)
    s_barrier
    """)
    a.stamp(10)
    a("""
    s_cmp_eq_u32 s5, 1
    s_cbranch_scc1 K2_Q1
    s_cmp_eq_u32 s5, 2
    s_cbranch_scc1 K2_Q2
    s_cmp_eq_u32 s5, 3
    s_cbranch_scc1 K2_Q3
    """)
    AFR=64; BFR=104; ACC=136
    def cts(e): return [0,1] if e<16 else [1]
    def loadsA(s_):
        base=56+(s_//32); o=8*(s_%32); r=AFR+4*(s_%10)
        return [f"ds_read2_b32 {vr(r,2)}, {vr(base)} offset0:{o} offset1:{o+1}",
                f"ds_read2_b32 {vr(r+2,2)}, {vr(base)} offset0:{o+2} offset1:{o+3}"]
    def loadsB(e):
        L=[]
        for kk in range(2):
            for ct in cts(e):
                r=BFR+16*(e&1)+4*(2*kk+ct)
                L.append(f"ds_read_b128 {vr(r,4)}, v61 offset:{(16*ct-e+15)*160+64*kk}")
        return L
    def conv(e0,e1):
        for s_ in range(4*e0,4*e0+6):
            for l in loadsA(s_): a(l)
        for l in loadsB(e0): a(l)
        first=set()
        if e0>=16:
            for mt in range(4):
                for r in range(4): a(f"v_mov_b32 {vr(ACC+4*(2*mt)+r)}, 0")
        for e in range(e0,e1):
            L=[]
            if e+1<e1:
                L+=loadsB(e+1)
                for s_ in range(4*e+6,4*e+10): L+=loadsA(s_)
            a(f"s_waitcnt lgkmcnt(0)")
            M=[]
            for kk in range(2):
                for ct in cts(e):
                    for mt in range(4):
                        acc=ACC+4*(2*mt+ct)
                        c=vr(acc,4) if (mt,ct) in first else "0"
                        first.add((mt,ct))
                        M.append(f"v_mfma_f32_16x16x32_bf16 {vr(acc,4)}, {vr(AFR+4*((4*e+mt+2*kk)%10),4)}, {vr(BFR+16*(e&1)+4*(2*kk+ct),4)}, {c}")
            per = 1 if len(M)>=16 else 2
            for m in M:
                a(m)
                for _ in range(per):
                    if L: a(L.pop(0))
            for l in L: a(l)
    conv(0,6)
    a("s_branch K2_EPI")
    a.label("K2_Q1"); conv(6,12); a("s_branch K2_EPI")
    a.label("K2_Q2"); conv(12,20); a("s_branch K2_EPI")
    a.label("K2_Q3"); conv(20,32)
    a.label("K2_EPI")
    a("s_nop 7")
    a.stamp(11)
    for mt in range(4):
        for ct in range(2):
            a(f"ds_write_b128 v62, {vr(ACC+4*(2*mt+ct),4)} offset:{ct*16*272+mt*64}")
    a(f"""
    v_lshrrev_b32 v16, 4, v0
    v_mul_u32_u24 v18, 57344, v16
    v_mul_u32_u24 v16, 272, v16
    v_and_b32 v17, 15, v0
    v_lshl_add_u32 v16, v17, 4, v16
    v_add_u32 v16, {YB0}, v16
    v_add_u32 v19, {4*8704}, v16
    s_and_b32 s6, s58, 1
    s_lshl_b32 s6, s6, 2
    s_bfe_u32 s7, s58, 0x10002
    s_lshl_b32 s7, s7, 3
    s_or_b32 s6, s6, s7
    v_xor_b32 v17, s6, v17
    v_lshl_add_u32 v18, v17, 3, v18
    s_lshl_b32 s6, s58, 8
    s_add_u32 s6, s6, {WS_HT}
    v_add_u32 v18, s6, v18
    s_waitcnt lgkmcnt(0)
    s_barrier
    """)
    for c in range(2):
        for qd in range(4):
            a(f"ds_read_b128 {vr(64+16*c+4*qd,4)}, {vr(16 if c==0 else 19)} offset:{8704*qd}")
    a("s_waitcnt lgkmcnt(0)")
    a.stamp(12)
    for c in range(2):
        ds="s12" if c==0 else "s13"
        for p in range(2):
            y=64+16*c+2*p
            a(f"v_pk_add_f32 {vr(y,2)}, {vr(y,2)}, {vr(y+4,2)}")
            a(f"v_pk_add_f32 {vr(y+8,2)}, {vr(y+8,2)}, {vr(y+12,2)}")
            a(f"v_pk_add_f32 {vr(y,2)}, {vr(y,2)}, {vr(y+8,2)}")
            a(f"v_cvt_pk_bf16_f32 v40, {vr(y)}, {vr(y+1)}")
            rnd_unpack(a,42,43,44+2*c+p)
            a(f"v_mul_f32 v42, {ds}, v42")
            a(f"v_mul_f32 v43, {ds}, v43")
            a(f"v_cvt_pk_bf16_f32 v42, v42, v43")
            rnd_unpack(a,41,40,40)
            rnd_unpack(a,43,42,42)
            a(f"v_add_f32 v41, v41, v43")
            a(f"v_add_f32 v40, v40, v42")
            a(f"v_cvt_pk_bf16_f32 v40, v41, v40")
            rnd_unpack(a,41,40,40)
            for k,dst in ((0,42),(1,43)):
                if c==0: a(f"v_lshlrev_b32 {vr(dst)}, 16, {vr(248+2*p+k)}")
                else: a(f"v_and_b32 {vr(dst)}, s15, {vr(248+2*p+k)}")
            a(f"v_add_f32 v41, v41, v42")
            a(f"v_add_f32 v40, v40, v43")
            a(f"v_cvt_pk_bf16_f32 {vr(96+2*c+p)}, v41, v40")
        a(f"global_store_dwordx2 v18, {vr(96+2*c,2)}, s[32:33] offset:{128*c}")
    a.stamp(13)
    a.wg_end(0,"k1a")
    a.dump_stamps(100,"k1a",base=32,wave=int(os.environ.get("STW","0")))
    a("s_endpgm")
    a.label("K1_LN")
    XA=8; F=64; SL=232; SH=236
    a(f"""
    s_lshl_b32 s6, s2, 8
    s_add_u32 s6, s6, {WS_SY}
    v_lshlrev_b32 v212, 7, v0
    v_add_u32 v212, s6, v212
    v_mov_b32 v213, 0
    v_cmp_gt_u32 vcc, 2, v0
    s_and_saveexec_b64 s[8:9], vcc
    s_waitcnt lgkmcnt(0)
    global_store_dword v212, v213, s[32:33]
    s_mov_b64 exec, s[8:9]
    s_getpc_b64 s[6:7]
K1_PC0:
    s_sub_u32 s6, s6, K1_PC0-k1_kernel
    s_subb_u32 s7, s7, 0
    v_lshlrev_b32 v1, 4, v0
    global_load_dwordx4 v[200:203], v1, s[6:7]
    v_add_u32 v1, 8192, v1
    global_load_dwordx4 v[204:207], v1, s[6:7]
    v_add_u32 v1, 8192, v1
    v_cmp_gt_u32 vcc, K1_PC0-k1_kernel, v1
    s_and_saveexec_b64 s[8:9], vcc
    global_load_dwordx4 v[208:211], v1, s[6:7]
    s_mov_b64 exec, s[8:9]
    s_lshl_b32 s4, s2, 6
    s_and_b32 s5, s3, 3
    s_lshl_b32 s5, s5, 4
    s_add_u32 s4, s4, s5               ; t0
    s_lshr_b32 s6, s3, 2               ; dh
    v_and_b32 v3, 15, v2
    v_lshrrev_b32 v4, 4, v2
    v_add_u32 v5, s4, v3               ; t
    v_mul_u32_u24 v6, 896, v5
    v_lshl_add_u32 v6, v4, 4, v6
    s_mul_i32 s7, s6, 448
    v_add_u32 v6, s7, v6
    s_mov_b32 s15, 0xffff0000
    s_waitcnt lgkmcnt(0)
    """)
    a.stamp(0)
    for kk in range(7): a(f"global_load_dwordx4 {vr(XA+4*kk,4)}, v6, s[16:17] offset:{64*kk}")
    a(f"""
    s_lshl_b32 s7, s3, 6
    v_lshl_add_u32 v250, v3, 2, s7
    v_xor_b32 v251, 256, v250
    """)
    ACC=240; AC2=242; TT=244; MEAN=246; ST=248
    DD=176
    a("s_waitcnt vmcnt(0)")
    a.stamp(1)
    for i in range(28):
        a(f"v_lshlrev_b32 {vr(F+2*i)}, 16, {vr(XA+i)}")
        a(f"v_and_b32 {vr(F+2*i+1)}, s15, {vr(XA+i)}")
        if i==0: a(f"v_pk_add_f32 {vr(ACC,2)}, {vr(F,2)}, 0")
        else: a(f"v_pk_add_f32 {vr(ACC,2)}, {vr(ACC,2)}, {vr(F+2*i,2)}")
    a.stamp(2)
    a(f"v_add_f32 {vr(ACC)}, {vr(ACC)}, {vr(ACC+1)}")
    xreduce(a,ACC,TT)
    a(f"""
    ds_write_b32 v250, {vr(ACC)}
    s_waitcnt lgkmcnt(0)
    s_barrier
    ds_read_b32 {vr(TT)}, v251
    s_waitcnt lgkmcnt(0)
    v_add_f32 {vr(ACC)}, {vr(ACC)}, {vr(TT)}
    """)
    a(f"v_mul_f32 {vr(MEAN)}, 0x3b124925, {vr(ACC)}")
    a(f"v_mov_b32 {vr(MEAN+1)}, {vr(MEAN)}")
    for i in range(28):
        t=TT if i%2==0 else 252
        a(f"v_pk_add_f32 {vr(t,2)}, {vr(F+2*i,2)}, {vr(MEAN,2)} neg_lo:[0,1] neg_hi:[0,1]")
        if i==0: a(f"v_pk_mul_f32 {vr(AC2,2)}, {vr(t,2)}, {vr(t,2)}")
        else: a(f"v_pk_fma_f32 {vr(AC2,2)}, {vr(t,2)}, {vr(t,2)}, {vr(AC2,2)}")
    a(f"v_add_f32 {vr(AC2)}, {vr(AC2)}, {vr(AC2+1)}")
    xreduce(a,AC2,TT)
    a(f"""
    ds_write_b32 v250, {vr(AC2)} offset:512
    s_waitcnt lgkmcnt(0)
    s_barrier
    ds_read_b32 {vr(TT)}, v251 offset:512
    s_waitcnt lgkmcnt(0)
    v_add_f32 {vr(AC2)}, {vr(AC2)}, {vr(TT)}
    s_cmp_ge_u32 s3, 4
    s_cbranch_scc1 K1_LNE
    v_mul_f32 {vr(AC2)}, 0x3b124925, {vr(AC2)}
    v_cvt_pk_bf16_f32 {vr(TT)}, {vr(MEAN)}, {vr(AC2)}
    v_lshlrev_b32 {vr(ST)}, 16, {vr(TT)}
    v_and_b32 {vr(TT)}, s15, {vr(TT)}
    v_add_f32 {vr(TT)}, 0x3727c5ac, {vr(TT)}
    v_cvt_pk_bf16_f32 {vr(TT)}, {vr(TT)}, {vr(TT)}
    v_and_b32 {vr(TT)}, s15, {vr(TT)}
    v_sqrt_f32 {vr(TT)}, {vr(TT)}
    v_cvt_pk_bf16_f32 {vr(TT)}, {vr(TT)}, {vr(TT)}
    v_and_b32 {vr(TT)}, s15, {vr(TT)}
    v_rcp_f32 {vr(ST+1)}, {vr(TT)}
    v_lshlrev_b32 {vr(TT+1)}, 3, v5
    v_add_u32 {vr(TT+1)}, {WS_ST}, {vr(TT+1)}
    s_mov_b64 exec, 0xffff
    global_store_dwordx2 {vr(TT+1)}, {vr(ST,2)}, s[32:33]
    s_mov_b64 exec, -1
K1_LNE:
    s_waitcnt vmcnt(0)
    s_barrier
    s_cmp_lg_u32 s3, 0
    s_cbranch_scc1 K1_LNX
    v_mov_b32 v1, 0
    v_mov_b32 v2, 1
    s_mov_b64 exec, 1
    global_atomic_add v3, v1, v2, s[34:35] sc0 sc1
    s_waitcnt vmcnt(0)
    v_readfirstlane_b32 s6, v3
    s_cmp_lg_u32 s6, 31
    s_cbranch_scc1 K1_LNY
    global_store_dword v1, v2, s[34:35] offset:128
K1_LNY:
    s_mov_b64 exec, -1
K1_LNX:
    s_getpc_b64 s[6:7]
K1_PC:
    s_add_u32 s6, s6, k3_kernel-K1_PC
    s_addc_u32 s7, s7, 0
    v_lshlrev_b32 v1, 4, v0
    global_load_dwordx4 v[8:11], v1, s[6:7]
    v_add_u32 v1, 8192, v1
    global_load_dwordx4 v[12:15], v1, s[6:7]
    v_add_u32 v1, 8192, v1
    v_cmp_gt_u32 vcc, K3_END-k3_kernel, v1
    s_and_saveexec_b64 s[8:9], vcc
    global_load_dwordx4 v[16:19], v1, s[6:7]
    s_mov_b64 exec, s[8:9]
    """)
    a.stamp(3)
    a.wg_end(0,"k1b")
    a.dump_stamps(10,"k1b",base=160)
    a.label("K1_END")
    a("s_endpgm")
    return a.text()+kd("k1_kernel",256,62,256), "; @launch kernel=k1_kernel grid=(256,1,1) block=(512,1,1) lds=115456"

def gen_k2():
    a=Asm()
    a.raw(head("k2_kernel"))
    a.wg_begin()
    UB=[0,8704]; CP=4288; KB=[17408,24960]; YB=[[32512,41216],[49920,58624]]
    a(f"""
    s_cmp_ge_u32 s2, 224
    s_cbranch_scc1 K2_END
    s_load_dwordx2 s[32:33], s[0:1], 112
    s_load_dwordx2 s[18:19], s[0:1], 64
    s_load_dwordx4 s[20:23], s[0:1], 80
    v_lshrrev_b32 v1, 6, v0
    v_and_b32 v2, 63, v0
    v_readfirstlane_b32 s3, v1
    s_mov_b32 s15, 0xffff0000
    s_mul_i32 s6, s2, {2*TP}
    v_lshlrev_b32 v3, 4, v0            ; 16*tid
    v_add_u32 v3, s6, v3
    s_lshl_b32 s6, s2, 13
    s_add_u32 s6, s6, {WS_KR}
    v_lshlrev_b32 v4, 4, v0
    v_add_u32 v4, s6, v4
    v_lshlrev_b32 v5, 6, v0
    v_add_u32 v5, {WS_ST}, v5
    s_lshl_b32 s10, s2, 2
    s_waitcnt lgkmcnt(0)
    """)
    a.stamp(0)
    a(f"""
    global_load_dwordx4 v[8:11], v3, s[32:33]
    v_add_u32 v6, {TP}, v3
    global_load_dwordx4 v[12:15], v6, s[32:33]
    global_load_dwordx4 v[24:27], v5, s[32:33]
    global_load_dwordx4 v[28:31], v5, s[32:33] offset:16
    global_load_dwordx4 v[32:35], v5, s[32:33] offset:32
    global_load_dwordx4 v[36:39], v5, s[32:33] offset:48
    global_load_dwordx4 v[16:19], v4, s[32:33]
    v_add_u32 v6, 4096, v4
    global_load_dwordx4 v[20:23], v6, s[32:33]
    s_load_dword s9, s[18:19], s10
    """)
    a(f"""
    v_mov_b32 v40, 0
    v_mov_b32 v41, 0
    v_mov_b32 v42, 0
    v_mov_b32 v43, 0
    v_lshlrev_b32 v6, 4, v0
    v_cmp_gt_u32 vcc, 150, v0
    s_and_saveexec_b64 s[34:35], vcc
    ds_write_b128 v6, v[40:43] offset:{KB[0]}
    ds_write_b128 v6, v[40:43] offset:{KB[1]}
    v_cmp_gt_u32 vcc, 8, v0
    s_and_b64 exec, exec, vcc
    ds_write_b128 v6, v[40:43] offset:{UB[0]}
    ds_write_b128 v6, v[40:43] offset:{UB[0]+CP}
    ds_write_b128 v6, v[40:43] offset:{UB[1]}
    ds_write_b128 v6, v[40:43] offset:{UB[1]+CP}
    s_mov_b64 exec, s[34:35]
    v_lshrrev_b32 v7, 3, v0
    v_mul_u32_u24 v7, 160, v7
    v_and_b32 v40, 7, v0
    v_lshl_add_u32 v7, v40, 4, v7
    s_waitcnt vmcnt(2)
    """)
    a.stamp(1)
    X=[8,12]; Uo=[44,48]
    for c in range(2):
        for p in range(4):
            rnd_unpack(a,40,41,X[c]+p)
            a(f"v_sub_f32 v40, v40, {vr(24+4*p)}")
            a(f"v_sub_f32 v41, v41, {vr(26+4*p)}")
            a(f"v_cvt_pk_bf16_f32 v40, v40, v41")
            rnd_unpack(a,41,42,40)
            a(f"v_mul_f32 v41, v41, {vr(25+4*p)}")
            a(f"v_mul_f32 v42, v42, {vr(27+4*p)}")
            a(f"v_cvt_pk_bf16_f32 {vr(Uo[c]+p)}, v41, v42")
    for c in range(2):
        u=Uo[c]
        a(f"ds_write_b128 v6, {vr(u,4)} offset:{UB[c]+128}")
        for k in range(3):
            a(f"v_alignbit_b32 {vr(52+k)}, {vr(u+k+1)}, {vr(u+k)}, 16")
        a(f"ds_write_b96 v6, v[52:54] offset:{UB[c]+CP+128}")
        a(f"ds_write_b16_d16_hi v6, {vr(u+3)} offset:{UB[c]+CP+128+12}")
        a(f"ds_write_b16 v6, {vr(u)} offset:{UB[c]+CP+128-2}")
    a(f"""
    s_waitcnt vmcnt(0)
    ds_write_b128 v7, v[16:19] offset:{KB[0]+15*160}
    ds_write_b128 v7, v[20:23] offset:{KB[1]+15*160}
    s_lshr_b32 s4, s3, 1
    s_and_b32 s5, s3, 1
    v_and_b32 v16, 15, v2
    v_lshrrev_b32 v17, 4, v2
    v_lshl_add_u32 v18, v17, 3, v16
    v_add_u32 v18, 1, v18
    v_and_b32 v19, 1, v18
    v_mul_u32_u24 v19, {CP}, v19
    v_lshrrev_b32 v18, 1, v18
    v_lshl_add_u32 v18, v18, 2, v19
    s_mul_i32 s6, s4, {UB[1]}
    v_add_u32 v20, s6, v18
    v_add_u32 v21, 1024, v20
    v_add_u32 v22, 2048, v20
    v_add_u32 v23, 3072, v20
    v_add_u32 v24, 4096, v20
    v_mul_u32_u24 v25, 160, v16
    v_lshl_add_u32 v25, v17, 4, v25
    s_mul_i32 s6, s4, {KB[1]-KB[0]}
    s_add_u32 s6, s6, {KB[0]}
    v_add_u32 v25, s6, v25
    v_mul_u32_u24 v26, 272, v16
    v_lshl_add_u32 v26, v17, 4, v26
    s_mul_i32 s6, s3, 8704
    s_add_u32 s6, s6, {YB[0][0]}
    v_add_u32 v26, s6, v26
    s_waitcnt lgkmcnt(0)
    s_barrier
    """)
    a.stamp(2)
    a("""
    s_cmp_eq_u32 s5, 1
    s_cbranch_scc1 K2_H1
    """)
    AFR=64; BFR=104; ACC=136
    def loadA(s):
        base=20+(s//32); o=8*(s%32); r=AFR+4*(s%10)
        a(f"ds_read2_b32 {vr(r,2)}, {vr(base)} offset0:{o} offset1:{o+1}")
        a(f"ds_read2_b32 {vr(r+2,2)}, {vr(base)} offset0:{o+2} offset1:{o+3}")
        return 2
    def cts(e): return [0,1] if e<16 else [1]
    def loadB(e):
        n=0
        for kk in range(2):
            for ct in cts(e):
                r=BFR+16*(e&1)+4*(2*kk+ct)
                a(f"ds_read_b128 {vr(r,4)}, v25 offset:{(16*ct-e+15)*160+64*kk}")
                n+=1
        return n
    def conv(e0,e1):
        for s in range(4*e0,4*e0+6): loadA(s)
        loadB(e0)
        first=set()
        for e in range(e0,e1):
            n=0
            if e+1<e1:
                for s in range(4*e+6,4*e+10): n+=loadA(s)
                n+=loadB(e+1)
            a(f"s_waitcnt lgkmcnt({n})")
            for kk in range(2):
                for ct in cts(e):
                    for mt in range(4):
                        acc=ACC+4*(2*mt+ct)
                        c=vr(acc,4) if (mt,ct) in first else "0"
                        first.add((mt,ct))
                        a(f"v_mfma_f32_16x16x32_bf16 {vr(acc,4)}, {vr(AFR+4*((4*e+mt+2*kk)%10),4)}, {vr(BFR+16*(e&1)+4*(2*kk+ct),4)}, {c}")
    conv(0,12)
    a("s_branch K2_EPI")
    a.label("K2_H1")
    conv(12,32)
    a.label("K2_EPI")
    a("s_nop 7")
    a.stamp(3)
    for mt in range(4):
        for ct in range(2):
            a(f"ds_write_b128 v26, {vr(ACC+4*(2*mt+ct),4)} offset:{ct*16*272+mt*64}")
    a(f"""
    v_lshrrev_b32 v16, 3, v0
    v_mul_u32_u24 v16, 272, v16
    v_and_b32 v17, 7, v0
    v_lshl_add_u32 v16, v17, 5, v16
    s_lshl_b32 s12, s9, 16
    s_and_b32 s13, s9, s15
    s_waitcnt lgkmcnt(0)
    s_barrier
    """)
    for c in range(2):
        for hf in range(2):
            a(f"ds_read_b128 {vr(64+16*c+8*hf,4)}, v16 offset:{YB[c][hf]}")
            a(f"ds_read_b128 {vr(64+16*c+8*hf+4,4)}, v16 offset:{YB[c][hf]+16}")
    a("s_waitcnt lgkmcnt(0)")
    a.stamp(4)
    for c in range(2):
        ds = "s12" if c==0 else "s13"
        for p in range(4):
            y0=64+16*c+2*p; y1=y0+8
            a(f"v_add_f32 v40, {vr(y0)}, {vr(y1)}")
            a(f"v_add_f32 v41, {vr(y0+1)}, {vr(y1+1)}")
            a(f"v_cvt_pk_bf16_f32 v40, v40, v41")
            rnd_unpack(a,42,43,Uo[c]+p)
            a(f"v_mul_f32 v42, {ds}, v42")
            a(f"v_mul_f32 v43, {ds}, v43")
            a(f"v_cvt_pk_bf16_f32 v42, v42, v43")
            rnd_unpack(a,41,40,40)
            rnd_unpack(a,43,42,42)
            a(f"v_add_f32 v41, v41, v43")
            a(f"v_add_f32 v40, v40, v42")
            a(f"v_cvt_pk_bf16_f32 v40, v41, v40")
            rnd_unpack(a,41,40,40)
            rnd_unpack(a,42,43,X[c]+p)
            a(f"v_add_f32 v41, v41, v42")
            a(f"v_add_f32 v40, v40, v43")
            a(f"v_cvt_pk_bf16_f32 {vr(96+4*c+p)}, v41, v40")
    a(f"""
    v_lshrrev_b32 v4, 3, v0
    v_mul_u32_u24 v4, 57344, v4
    v_and_b32 v5, 7, v0
    v_lshl_add_u32 v4, v5, 4, v4
    s_lshl_b32 s6, s2, 8
    s_add_u32 s6, s6, {WS_HT}
    v_add_u32 v4, s6, v4
    global_store_dwordx4 v4, v[96:99], s[32:33]
    global_store_dwordx4 v4, v[100:103], s[32:33] offset:128
    """)
    a.stamp(5)
    a.wg_end(1,"k2a")
    a.dump_stamps(100,"k2a")
    a("s_endpgm")
    a.label("K2_END")
    a("s_endpgm")
    return a.text()+kd("k2_kernel",200,40,200), "; @launch kernel=k2_kernel grid=(224,1,1) block=(256,1,1) lds=67328"

def gen_k3():
    a=Asm()
    a.raw(head("k3_kernel"))
    a.wg_begin()
    a(f"""
    s_cmp_ge_u32 s2, 256
    s_cbranch_scc1 K3_END
    s_load_dwordx2 s[32:33], s[0:1], 112
    v_lshrrev_b32 v1, 6, v0
    v_and_b32 v2, 63, v0
    v_readfirstlane_b32 s3, v1
    s_mov_b32 s15, 0xffff0000
    s_cmp_ge_u32 s2, 224
    s_cbranch_scc1 K3_PF
    """)
    tile_ids(a)
    RW=8; F=40; ACC=152; SL=184; SH=188; LNB=57344
    a(f"""
    v_and_b32 v3, 15, v2
    v_lshrrev_b32 v4, 4, v2
    v_lshlrev_b32 v7, 4, v2
    s_mul_i32 s7, s4, 57344
    s_mul_i32 s8, s3, 7168
    s_add_u32 s7, s7, s8
    s_add_u32 s7, s7, {WS_HT}
    v_add_u32 v5, s7, v7
    s_lshl_b32 s7, s5, 4
    s_lshl_b32 s9, s3, 1
    s_add_u32 s7, s7, s9
    s_mul_i32 s7, s7, {14*1024}
    s_add_u32 s7, s7, {WS_W1F}
    v_add_u32 v208, s7, v7
    v_add_u32 v209, {14*1024}, v208
    v_add_u32 v214, {LNB}, v7
    s_lshl_b32 s7, s4, 2
    s_mul_i32 s7, s7, 56
    s_lshl_b32 s9, s5, 3
    s_add_u32 s7, s7, s9
    s_add_u32 s7, s7, s3
    s_lshl_b32 s7, s7, 10
    s_add_u32 s7, s7, {WS_HF}
    v_add_u32 v6, s7, v7
    s_waitcnt lgkmcnt(0)
    s_mov_b32 s36, s32
    s_mov_b32 s37, s33
    s_mov_b32 s38, {WS_HT+32*57344}
    s_mov_b32 s39, 0x00020000
    """)
    a.stamp(0)
    for i in range(7):
        if i%4==0:
            a(f"s_add_u32 m0, s8, {1024*i}")
            a(f"s_mov_b32 s14, {1024*i}")
        a(f"buffer_load_dwordx4 v5, s[36:39], s14 offen offset:{1024*(i%4)} lds")
    def w1load(kk):
        for q in range(2):
            if kk%4==0 and kk>0: a(f"v_add_u32 {vr(208+q)}, 4096, {vr(208+q)}")
            a(f"global_load_dwordx4 {vr(F+8*kk+4*q,4)}, {vr(208+q)}, s[32:33] offset:{1024*(kk%4)}")
    a("""
    s_cmp_lt_u32 s3, 4
    s_cbranch_scc1 K3_LN
    """)
    for kk in range(4): w1load(kk)
    a("s_waitcnt vmcnt(8)\ns_barrier")
    for kk in range(4,14): w1load(kk)
    a("s_branch K3_MAIN")
    a.label("K3_LN")
    a(f"""
    s_lshl_b32 s6, s4, 6
    s_lshl_b32 s7, s3, 4
    s_add_u32 s6, s6, s7               ; tb
    v_lshrrev_b32 v192, 2, v3
    v_lshlrev_b32 v193, 3, v192
    v_and_b32 v194, 3, v3
    v_add_u32 v193, v193, v194
    v_lshrrev_b32 v194, 1, v4
    v_lshl_add_u32 v193, v194, 2, v193
    v_lshlrev_b32 v193, 7, v193
    v_and_b32 v192, 1, v192
    v_lshlrev_b32 v192, 2, v192
    v_bfe_u32 v194, v3, 1, 1
    v_lshl_add_u32 v192, v194, 1, v192
    s_lshl_b32 s7, s3, 1
    v_and_b32 v194, 1, v4
    v_add_u32 v194, s7, v194
    v_xor_b32 v194, v194, v192
    v_lshl_add_u32 v215, v194, 4, v193
    v_add_u32 v210, s6, v3
    v_mul_u32_u24 v210, 896, v210
    v_lshl_add_u32 v210, v4, 4, v210
    v_add_u32 v210, {WS_HR}, v210
    s_mul_i32 s7, s3, {14*1024}
    s_add_u32 s7, s7, {LNB}
    v_add_u32 v211, s7, v7
    """)
    build_sel(a,2,SL,SH,192,193,194)
    a.stamp(1)
    a("s_waitcnt vmcnt(0)\ns_barrier")
    a.stamp(2)
    ACCs=192; AC2=194; TT=196; MEAN=198; MB=200; RS=202; T2=204
    for hf in range(2):
        for j in range(7):
            a(f"ds_read_b128 {vr(RW+4*j,4)}, v215 offset:{4096*(7*hf+j)}")
        for j in range(7):
            jj=7*hf+j
            a(f"s_waitcnt lgkmcnt({6-j})")
            a(f"v_mfma_f32_16x16x32_bf16 {vr(F+8*jj,4)}, {vr(RW+4*j,4)}, {vr(SL,4)}, 0")
            a(f"v_mfma_f32_16x16x32_bf16 {vr(F+8*jj+4,4)}, {vr(RW+4*j,4)}, {vr(SH,4)}, 0")
    for i in range(56):
        if i==0: a(f"v_pk_add_f32 {vr(ACCs,2)}, {vr(F,2)}, 0")
        else: a(f"v_pk_add_f32 {vr(ACCs,2)}, {vr(ACCs,2)}, {vr(F+2*i,2)}")
    for jp in range(7):
        a(f"s_cmp_eq_u32 s5, {jp}")
        a(f"s_cbranch_scc0 K3_SK{jp}")
        for j in (2*jp,2*jp+1):
            o=8+4*(j&1)
            for q in range(4):
                a(f"v_cvt_pk_bf16_f32 {vr(o+q)}, {vr(F+8*j+2*q)}, {vr(F+8*j+2*q+1)}")
            a(f"global_store_dwordx4 v210, {vr(o,4)}, s[32:33] offset:{64*j}")
        a.label(f"K3_SK{jp}")
    a("s_nop 1")
    a(f"v_add_f32 {vr(ACCs)}, {vr(ACCs)}, {vr(ACCs+1)}")
    xreduce(a,ACCs,TT)
    a(f"v_mul_f32 {vr(MEAN)}, 0x3b124925, {vr(ACCs)}")
    a(f"v_mov_b32 {vr(MEAN+1)}, {vr(MEAN)}")
    for i in range(56):
        t=TT if i%2==0 else T2
        a(f"v_pk_add_f32 {vr(t,2)}, {vr(F+2*i,2)}, {vr(MEAN,2)} neg_lo:[0,1] neg_hi:[0,1]")
        if i==0: a(f"v_pk_mul_f32 {vr(AC2,2)}, {vr(t,2)}, {vr(t,2)}")
        else: a(f"v_pk_fma_f32 {vr(AC2,2)}, {vr(t,2)}, {vr(t,2)}, {vr(AC2,2)}")
    a(f"v_add_f32 {vr(AC2)}, {vr(AC2)}, {vr(AC2+1)}")
    xreduce(a,AC2,TT)
    a(f"""
    v_mul_f32 {vr(AC2)}, 0x3b124925, {vr(AC2)}
    v_cvt_pk_bf16_f32 {vr(TT)}, {vr(MEAN)}, {vr(AC2)}
    v_lshlrev_b32 {vr(MB)}, 16, {vr(TT)}
    v_mov_b32 {vr(MB+1)}, {vr(MB)}
    v_and_b32 {vr(TT)}, s15, {vr(TT)}
    v_add_f32 {vr(TT)}, 0x3727c5ac, {vr(TT)}
    v_cvt_pk_bf16_f32 {vr(TT)}, {vr(TT)}, {vr(TT)}
    v_and_b32 {vr(TT)}, s15, {vr(TT)}
    v_sqrt_f32 {vr(TT)}, {vr(TT)}
    v_cvt_pk_bf16_f32 {vr(TT)}, {vr(TT)}, {vr(TT)}
    v_and_b32 {vr(TT)}, s15, {vr(TT)}
    v_rcp_f32 {vr(RS)}, {vr(TT)}
    v_mov_b32 {vr(RS+1)}, {vr(RS)}
    """)
    a.stamp(3)
    for j in range(14):
        o=16+4*(j%2)
        for q in range(4):
            t=TT if q%2==0 else T2
            a(f"v_pk_add_f32 {vr(t,2)}, {vr(F+8*j+2*q,2)}, {vr(MB,2)} neg_lo:[0,1] neg_hi:[0,1]")
            a(f"v_cvt_pk_bf16_f32 {vr(t)}, {vr(t)}, {vr(t+1)}")
            a(f"v_and_b32 {vr(t+1)}, s15, {vr(t)}")
            a(f"v_lshlrev_b32 {vr(t)}, 16, {vr(t)}")
            a(f"v_pk_mul_f32 {vr(t,2)}, {vr(t,2)}, {vr(RS,2)}")
            a(f"v_cvt_pk_bf16_f32 {vr(o+q)}, {vr(t)}, {vr(t+1)}")
        a(f"ds_write_b128 v211, {vr(o,4)} offset:{1024*j}")
        if j>=10: w1load(j-10)
    a.stamp(4)
    a("""
    s_waitcnt lgkmcnt(0)
    s_barrier
    """)
    for kk in range(4,14): w1load(kk)
    a("s_branch K3_MAIN2")
    a.label("K3_MAIN")
    a("""
    s_barrier
    """)
    a.label("K3_MAIN2")
    a.stamp(5)
    BF=8
    def loadsB(kk,buf):
        return [f"ds_read_b128 {vr(BF+16*buf+4*tt,4)}, v214 offset:{(tt*14+kk)*1024}" for tt in range(4)]
    for l in loadsB(0,0): a(l)
    for kk in range(14):
        L=loadsB(kk+1,(kk+1)&1) if kk+1<14 else []
        a(f"s_waitcnt vmcnt({2*(13-kk)}) lgkmcnt(0)")
        for q in range(2):
            for tt in range(4):
                acc=ACC+4*(4*q+tt)
                c="0" if kk==0 else vr(acc,4)
                a(f"v_mfma_f32_16x16x32_bf16 {vr(acc,4)}, {vr(F+8*kk+4*q,4)}, {vr(BF+16*(kk&1)+4*tt,4)}, {c}")
                if L: a(L.pop(0))
    a.stamp(6)
    for tt in range(4):
        a(f"v_add_u32 v5, {tt*56*1024}, v6")
        o=40+4*tt
        for dq in range(2):
            acc=ACC+4*(4*dq+tt)
            for r in range(4): a(f"v_max_f32 {vr(acc+r)}, 0, {vr(acc+r)}")
            a(f"v_cvt_pk_bf16_f32 {vr(o+2*dq)}, {vr(acc)}, {vr(acc+1)}")
            a(f"v_cvt_pk_bf16_f32 {vr(o+2*dq+1)}, {vr(acc+2)}, {vr(acc+3)}")
        a(f"global_store_dwordx4 v5, {vr(o,4)}, s[32:33]")
    a.stamp(7)
    NS=5
    a(f"""
    s_load_dwordx2 s[34:35], s[0:1], 96
    s_lshl_b32 s20, s4, 8
    s_add_u32 s20, s20, {WS_SY}
    v_mov_b32 v1, s20
    s_waitcnt vmcnt(0) lgkmcnt(0)
    s_barrier
    s_cmp_ge_u32 s3, 4
    s_cbranch_scc1 K4_LD
    s_cmp_lg_u32 s3, 0
    s_cbranch_scc1 K4_NOSIG
    v_mov_b32 v5, 1
    s_mov_b64 exec, 1
    global_atomic_add v6, v1, v5, s[32:33] sc0 sc1
    s_waitcnt vmcnt(0)
    v_readfirstlane_b32 s6, v6
    s_cmp_lg_u32 s6, 6
    s_cbranch_scc1 K4_SIGX
    global_store_dword v1, v5, s[32:33] offset:128
K4_SIGX:
    s_mov_b64 exec, -1
K4_NOSIG:
    s_and_b32 s10, s3, 1
    s_lshr_b32 s11, s3, 1
    s_lshl_b32 s6, s4, 6
    s_lshl_b32 s7, s11, 5
    s_add_u32 s6, s6, s7
    v_add_u32 v8, s6, v3
    v_mul_u32_u24 v8, 896, v8
    v_lshl_add_u32 v8, v4, 4, v8
    s_lshl_b32 s6, s5, 7
    s_lshl_b32 s7, s10, 6
    s_add_u32 s6, s6, s7
    v_add_u32 v8, s6, v8
    v_add_u32 v9, {16*896}, v8
    v_add_u32 v10, {WS_HR}, v8
    v_add_u32 v11, {WS_HR}, v9
    s_lshl_b32 s6, s10, 13
    v_add_u32 v12, s6, v7
    s_lshl_b32 s6, s11, 13
    s_add_u32 s6, s6, 16384
    v_add_u32 v13, s6, v7
    v_add_u32 v14, 65536, v12
    v_add_u32 v15, 65536, v13
    v_add_u32 v56, 131072, v12
    v_add_u32 v57, 131072, v13
    """)
    a.stamp(8)
    FR=24; ACC2=64
    for st in range(14):
        a("s_barrier")
        if st==0:
            a("global_load_dwordx4 v[16:19], v10, s[32:33] sc1")
            a("global_load_dwordx4 v[20:23], v11, s[32:33] sc1")
        if st in (0,1,7,13): a.stamp({0:9,1:10,7:11,13:12}[st])
        sl=st%NS
        def rd(ks):
            b=FR+16*(ks&1)
            ra,rb=(("v12","v13"),("v14","v15"),("v56","v57"))[sl//2]
            so=(sl%2)*32768
            return [f"ds_read_b128 {vr(b,4)}, {ra} offset:{so+ks*1024}",
                    f"ds_read_b128 {vr(b+8,4)}, {rb} offset:{so+ks*1024}",
                    f"ds_read_b128 {vr(b+4,4)}, {ra} offset:{so+4096+ks*1024}",
                    f"ds_read_b128 {vr(b+12,4)}, {rb} offset:{so+4096+ks*1024}"]
        for l in rd(0): a(l)
        for ks in range(4):
            L=rd(ks+1) if ks<3 else []
            a(f"s_waitcnt lgkmcnt(0)")
            b=FR+16*(ks&1)
            for dq in range(2):
                for tq in range(2):
                    acc=ACC2+4*(2*dq+tq)
                    c="0" if (st==0 and ks==0) else vr(acc,4)
                    if L: a(L.pop(0))
                    a(f"v_mfma_f32_16x16x32_bf16 {vr(acc,4)}, {vr(b+4*dq,4)}, {vr(b+8+4*tq,4)}, {c}")
    a.stamp(13)
    a("s_waitcnt vmcnt(0)")
    for tq in range(2):
        H=16+4*tq; o=24+4*tq
        for dq in range(2):
            acc=ACC2+4*(2*dq+tq)
            for pr in range(2):
                a(f"v_cvt_pk_bf16_f32 v40, {vr(acc+2*pr)}, {vr(acc+2*pr+1)}")
                rnd_unpack(a,41,40,40)
                rnd_unpack(a,42,43,H+2*dq+pr)
                a(f"v_add_f32 v41, v41, v42")
                a(f"v_add_f32 v40, v40, v43")
                a(f"v_cvt_pk_bf16_f32 {vr(o+2*dq+pr)}, v41, v40")
        a(f"global_store_dwordx4 {vr(8+tq)}, {vr(o,4)}, s[34:35]")
    a.stamp(14)
    a.wg_end(2,"k3a")
    a.dump_stamps(100,"k3a",wave=0)
    a("s_endpgm")
    a.label("K4_LD")
    a(f"""
    s_sub_u32 s3, s3, 4
    s_lshl_b32 s6, s5, 2
    s_add_u32 s6, s6, s3
    s_mul_i32 s6, s6, {56*1024}
    s_add_u32 s6, s6, {WS_W2F}
    v_add_u32 v5, s6, v7
    s_lshl_b32 s6, s4, 2
    s_add_u32 s6, s6, s3
    s_mul_i32 s6, s6, {56*1024}
    s_add_u32 s6, s6, {WS_HF}
    v_add_u32 v6, s6, v7
    s_lshl_b32 s12, s3, 12
    s_add_u32 s13, s12, 16384
    s_mov_b32 s38, {WS_W2F+0x188000}
    """)
    vq=[]
    def issueA(st):
        sl=st%NS
        a(f"s_mov_b32 s14, {st*4096}")
        a(f"s_add_u32 m0, s12, {sl*32768}")
        for k in range(4):
            a(f"buffer_load_dwordx4 v5, s[36:39], s14 offen offset:{1024*k} lds"); vq.append(('A',st))
    def issueB(st):
        sl=st%NS
        a(f"s_mov_b32 s14, {st*4096}")
        a(f"s_add_u32 m0, s13, {sl*32768}")
        for k in range(4):
            a(f"buffer_load_dwordx4 v6, s[36:39], s14 offen offset:{1024*k} lds"); vq.append(('B',st))
    for st in range(NS): issueA(st)
    a(f"""
    s_mov_b32 s6, 0
K4_POLL:
    global_load_dword v11, v1, s[32:33] offset:128 sc1
    s_waitcnt vmcnt(0)
    v_readfirstlane_b32 s7, v11
    s_cmp_eq_u32 s7, 1
    s_cbranch_scc1 K4_POLLED
    s_sleep 2
    s_add_u32 s6, s6, 1
    s_cmp_lt_u32 s6, 0x100000
    s_cbranch_scc1 K4_POLL
K4_POLLED:
    """)
    vq.clear()
    nb=0; na=NS
    def uptoB(n):
        nonlocal nb
        while nb<min(n,14): issueB(nb); nb+=1
    def uptoA(n):
        nonlocal na
        while na<min(n,14): issueA(na); na+=1
    uptoB(2)
    for st in range(14):
        last=max(i for i,t in enumerate(vq) if t[1]<=st)
        a(f"s_waitcnt vmcnt({len(vq)-1-last})")
        a("s_barrier")
        uptoB(min(st+NS, nb+2))
        uptoA(st+NS)
    a("s_endpgm")
    a.label("K3_PF")
    a(f"""
    s_sub_u32 s4, s2, 224
    s_lshr_b32 s4, s4, 3
    s_lshl_b32 s4, s4, 3
    s_add_u32 s4, s4, s3
    s_mul_i32 s4, s4, {49*1024}
    s_add_u32 s4, s4, {WS_W2F}
    v_lshlrev_b32 v7, 4, v2
    v_add_u32 v7, s4, v7
    s_waitcnt lgkmcnt(0)
    """)
    for i in range(49):
        if i%4==0 and i>0: a("v_add_u32 v7, 4096, v7")
        if i>=24: a("s_waitcnt vmcnt(23)")
        a(f"global_load_dwordx4 {vr(8+4*(i%24),4)}, v7, s[32:33] offset:{1024*(i%4)}")
    a.label("K3_END")
    a("s_endpgm")
    return a.text()+kd("k3_kernel",216,48,216), "; @launch kernel=k3_kernel grid=(256,1,1) block=(512,1,1) lds=163840"

def gen_k4():
    a=Asm()
    a.raw(head("k4_kernel"))
    a.wg_begin()
    NS=5
    a(f"""
    s_cmp_ge_u32 s2, 256
    s_cbranch_scc1 K4_END
    s_load_dwordx2 s[32:33], s[0:1], 112
    s_load_dwordx2 s[34:35], s[0:1], 96
    v_lshrrev_b32 v1, 6, v0
    v_and_b32 v2, 63, v0
    v_readfirstlane_b32 s3, v1
    s_mov_b32 s15, 0xffff0000
    s_cmp_ge_u32 s2, 224
    s_cbranch_scc1 K4_PF
    """)
    tile_ids(a)
    a(f"""
    v_lshlrev_b32 v7, 4, v2
    s_cmp_ge_u32 s3, 4
    s_cbranch_scc1 K4_LD
    v_and_b32 v3, 15, v2
    v_lshrrev_b32 v4, 4, v2
    s_and_b32 s10, s3, 1
    s_lshr_b32 s11, s3, 1
    s_lshl_b32 s6, s4, 6
    s_lshl_b32 s7, s11, 5
    s_add_u32 s6, s6, s7
    v_add_u32 v8, s6, v3
    v_mul_u32_u24 v8, 896, v8
    v_lshl_add_u32 v8, v4, 4, v8
    s_lshl_b32 s6, s5, 7
    s_lshl_b32 s7, s10, 6
    s_add_u32 s6, s6, s7
    v_add_u32 v8, s6, v8
    v_add_u32 v9, {16*896}, v8
    v_add_u32 v10, {WS_HR}, v8
    v_add_u32 v11, {WS_HR}, v9
    s_lshl_b32 s6, s10, 13
    v_add_u32 v12, s6, v7
    s_lshl_b32 s6, s11, 13
    s_add_u32 s6, s6, 16384
    v_add_u32 v13, s6, v7
    v_add_u32 v14, 65536, v12
    v_add_u32 v15, 65536, v13
    v_add_u32 v56, 131072, v12
    v_add_u32 v57, 131072, v13
    s_waitcnt lgkmcnt(0)
    global_load_dwordx4 v[16:19], v10, s[32:33]
    global_load_dwordx4 v[20:23], v11, s[32:33]
    """)
    a.stamp(0)
    FR=24; ACC=64
    for st in range(14):
        a("s_barrier")
        if st in (0,1,7,13): a.stamp({0:1,1:2,7:3,13:4}[st])
        sl=st%NS
        def rd(ks):
            b=FR+16*(ks&1)
            ra,rb=(("v12","v13"),("v14","v15"),("v56","v57"))[sl//2]
            so=(sl%2)*32768
            return [f"ds_read_b128 {vr(b,4)}, {ra} offset:{so+ks*1024}",
                    f"ds_read_b128 {vr(b+8,4)}, {rb} offset:{so+ks*1024}",
                    f"ds_read_b128 {vr(b+4,4)}, {ra} offset:{so+4096+ks*1024}",
                    f"ds_read_b128 {vr(b+12,4)}, {rb} offset:{so+4096+ks*1024}"]
        for l in rd(0): a(l)
        for ks in range(4):
            L=rd(ks+1) if ks<3 else []
            a(f"s_waitcnt lgkmcnt(0)")
            b=FR+16*(ks&1)
            for dq in range(2):
                for tq in range(2):
                    acc=ACC+4*(2*dq+tq)
                    c="0" if (st==0 and ks==0) else vr(acc,4)
                    if L: a(L.pop(0))
                    a(f"v_mfma_f32_16x16x32_bf16 {vr(acc,4)}, {vr(b+4*dq,4)}, {vr(b+8+4*tq,4)}, {c}")
    a.stamp(5)
    a("s_waitcnt vmcnt(0)")
    for tq in range(2):
        H=16+4*tq; o=24+4*tq
        for dq in range(2):
            acc=ACC+4*(2*dq+tq)
            for pr in range(2):
                a(f"v_cvt_pk_bf16_f32 v40, {vr(acc+2*pr)}, {vr(acc+2*pr+1)}")
                rnd_unpack(a,41,40,40)
                rnd_unpack(a,42,43,H+2*dq+pr)
                a(f"v_add_f32 v41, v41, v42")
                a(f"v_add_f32 v40, v40, v43")
                a(f"v_cvt_pk_bf16_f32 {vr(o+2*dq+pr)}, v41, v40")
        a(f"global_store_dwordx4 {vr(8+tq)}, {vr(o,4)}, s[34:35]")
    a.stamp(6)
    a.wg_end(3,"k4a")
    a.dump_stamps(100,"k4a")
    a("s_endpgm")
    a.label("K4_LD")
    a(f"""
    s_sub_u32 s3, s3, 4
    s_lshl_b32 s6, s5, 2
    s_add_u32 s6, s6, s3
    s_mul_i32 s6, s6, {56*1024}
    s_add_u32 s6, s6, {WS_W2F}
    v_add_u32 v5, s6, v7
    s_lshl_b32 s6, s4, 2
    s_add_u32 s6, s6, s3
    s_mul_i32 s6, s6, {56*1024}
    s_add_u32 s6, s6, {WS_HF}
    v_add_u32 v6, s6, v7
    s_lshl_b32 s12, s3, 12
    s_add_u32 s13, s12, 16384
    s_waitcnt lgkmcnt(0)
    s_mov_b32 s36, s32
    s_mov_b32 s37, s33
    s_mov_b32 s38, {WS_W2F+0x188000}
    s_mov_b32 s39, 0x00020000
    """)
    def issue(st):
        sl=st%NS
        a(f"s_mov_b32 s14, {st*4096}")
        a(f"s_add_u32 m0, s12, {sl*32768}")
        for k in range(4): a(f"buffer_load_dwordx4 v5, s[36:39], s14 offen offset:{1024*k} lds")
        a(f"s_add_u32 m0, s13, {sl*32768}")
        for k in range(4): a(f"buffer_load_dwordx4 v6, s[36:39], s14 offen offset:{1024*k} lds")
    issued=0
    def upto(n):
        nonlocal issued
        while issued<min(n,14):
            issue(issued); issued+=1
    upto(2)
    for st in range(14):
        a(f"s_waitcnt vmcnt({8*(issued-1-st)})")
        a("s_barrier")
        upto(min(st+NS, issued+2))
    a("s_endpgm")
    a.label("K4_PF")
    a(f"""
    s_and_b32 s4, s2, 7
    s_lshl_b32 s4, s4, 2
    s_sub_u32 s5, s2, 224
    s_lshr_b32 s5, s5, 3
    s_add_u32 s4, s4, s5               ; mtile
    s_lshl_b32 s4, s4, 2
    s_and_b32 s5, s3, 3
    s_add_u32 s4, s4, s5               ; t-tile
    s_mul_i32 s4, s4, {56*1024}
    s_lshr_b32 s5, s3, 2
    s_mul_i32 s5, s5, {18*1024}
    s_add_u32 s4, s4, s5
    s_add_u32 s4, s4, {WS_HF+20*1024}
    v_lshlrev_b32 v7, 4, v2
    v_add_u32 v7, s4, v7
    s_waitcnt lgkmcnt(0)
    """)
    for i in range(18):
        if i%4==0 and i>0: a("v_add_u32 v7, 4096, v7")
        a(f"global_load_dwordx4 {vr(8+4*i,4)}, v7, s[32:33] offset:{1024*(i%4)}")
    a.label("K4_END")
    a("s_endpgm")
    return a.text()+kd("k4_kernel",96,48,96), "; @launch kernel=k4_kernel grid=(256,1,1) block=(512,1,1) lds=163840"

def build(kernels, path):
    hdr=open("cdna_kernels/"+NAME+".s.ref").read().split("; Override launch")[0]
    txt=""; launches=""
    for k in kernels:
        t,l=k(); txt+=t; launches+=l+"\n"
    s=hdr+launches+'.amdgcn_target "amdgcn-amd-amdhsa--gfx950"\n.text\n'+txt
    open(path,"w").write(s)

if __name__=="__main__":
    import os
    Asm.STMOD=os.environ.get("STMOD","")
    build([gen_k1,gen_k3], "k_f34.s")
    Asm.STAMPS=True
    build([gen_k1,gen_k3], "kst_f34.s")
```
